```python
import torch

def _softmax(x, axis=-1):
    return torch.softmax(x, dim=axis)
def _gelu(x):
    return torch.nn.functional.gelu(x, approximate="tanh")
def _silu(x):
    return torch.nn.functional.silu(x)
def _sigmoid(x):
    return torch.sigmoid(x)
def _layernorm(x, axis=-1, eps=1e-5):
    m = x.mean(dim=axis, keepdim=True)
    v = x.var(dim=axis, keepdim=True, unbiased=False)
    return (x - m) / torch.sqrt(v + eps)
def _scatter_add(tgt, idx, src, axis=0):
    return tgt.clone().index_add_(axis, idx, src)
def _segment_sum(src, seg, n):
    out = torch.zeros((n,) + src.shape[1:], dtype=src.dtype)
    return out.index_add_(0, seg, src)
def _pad(x, pw):
    flat = tuple(v for pair in reversed(pw) for v in pair)
    return torch.nn.functional.pad(x, flat)

kernel_name = 'gated_mix__sliding_local_dilated__dense_activation_gelu__prompt'

def setup_inputs():

    _w = (lambda a: (lambda t: t.to(torch.bfloat16) if t.is_floating_point() else t)(torch.as_tensor(a)))
    def _A_setup():
        B, S, D = 1, 2048, 512
        return {
            "x": _w((lambda *s: torch.randn(*s, dtype=torch.bfloat16) * 0.05)(B, S, D)),
            "wqkv": _w((lambda *s: torch.randn(*s, dtype=torch.bfloat16) * 0.8)(D, 3 * D)),
            "wo": _w((lambda *s: torch.randn(*s, dtype=torch.bfloat16) * 0.05)(D, D)),
        }
    _A_in = _A_setup()

    def _B_setup():
        B, S, D, F = 1, 2048, 512, 1792
        return {
            "x": _w((lambda *s: torch.randn(*s, dtype=torch.bfloat16) * 0.05)(B, S, D)),
            "w1": _w((lambda *s: torch.randn(*s, dtype=torch.bfloat16) * 12.8)(D, F) * (D ** -0.5)),
            "b1": _w((lambda *s: torch.randn(*s, dtype=torch.bfloat16) * 12.8)(F) * 0.01),
            "w2": _w((lambda *s: torch.randn(*s, dtype=torch.bfloat16) * 1.6)(F, D) * (F ** -0.5)),
            "b2": _w((lambda *s: torch.randn(*s, dtype=torch.bfloat16) * 12.8)(D) * 0.01),
        }
    _B_in = _B_setup()

    return {
        "A_x": _A_in["x"],
        "A_wqkv": _A_in["wqkv"],
        "A_wo": _A_in["wo"],
        "B_x": _B_in["x"],
        "B_w1": _B_in["w1"],
        "B_b1": _B_in["b1"],
        "B_w2": _B_in["w2"],
        "B_b2": _B_in["b2"],
        "gate_w": _w((lambda *s: torch.randn(*s, dtype=torch.bfloat16) * 0.05)(512) * 16.0),
    }

def reference(A_x, A_wqkv, A_wo, B_x, B_w1, B_b1, B_w2, B_b2, gate_w):
    def _A_ref(x, wqkv, wo):
        B, S, D = x.shape
        H = 32; Dh = D // H
        W, dil = 8, 2
        qkv = (lambda x, *d: x.permute(*d))((x @ wqkv).reshape(B, S, 3, H, Dh), 2, 0, 3, 1, 4)
        q, k, v = qkv[0], qkv[1], qkv[2]
        scale = Dh ** -0.5
        pos = torch.arange(S)
        off = torch.arange(W) * dil
        idx = pos[:, None] - off[None, :]
        mask = idx >= 0
        idx_c = torch.where(mask, idx, 0).reshape(-1)
        kg = k[:, :, idx_c, :].reshape(B, H, S, W, Dh)
        vg = v[:, :, idx_c, :].reshape(B, H, S, W, Dh)
        logits = torch.einsum("bhsd,bhswd->bhsw", q, kg) * scale
        logits = torch.where(mask[None, None, :, :], logits, -1e9)
        attn = _softmax(logits, axis=-1)
        o = torch.einsum("bhsw,bhswd->bhsd", attn, vg)
        return (lambda x, *d: x.permute(*d))(o, 0, 2, 1, 3).reshape(B, S, D) @ wo

    def _B_ref(x, w1, b1, w2, b2):
        h = torch.einsum("bsd,df->bsf", x, w1) + b1
        h = _gelu(h)
        return torch.einsum("bsf,fd->bsd", h, w2) + b2

    x = A_x
    g = _sigmoid((x * gate_w).sum(-1, keepdims=True))
    a = _A_ref(x, A_wqkv, A_wo)
    b = _B_ref(x, B_w1, B_b1, B_w2, B_b2)
    return g * a + (1 - g) * b
```

```python
KNAME = "gated_mix__sliding_local_dilated__dense_activation_gelu__prompt"

class Asm:
    def __init__(self):
        self.lines = []
    def __call__(self, s=""):
        for l in s.split("\n"):
            self.lines.append(l if l.endswith(":") else "    " + l.strip())
    def label(self, n):
        self.lines.append(n + ":")
    def text(self):
        return "\n".join(self.lines) + "\n"

def kernel_open(name):
    return f".globl {name}\n.p2align 8\n.type {name},@function\n{name}:\n"

def kernel_desc(name, vgpr, accum, sgpr=102):
    return (f".amdhsa_kernel {name}\n  .amdhsa_next_free_vgpr {vgpr}\n  .amdhsa_next_free_sgpr {sgpr}\n"
            f"  .amdhsa_accum_offset {accum}\n  .amdhsa_group_segment_fixed_size 0\n  .amdhsa_kernarg_size 96\n"
            f"  .amdhsa_user_sgpr_count 2\n  .amdhsa_user_sgpr_kernarg_segment_ptr 1\n"
            f"  .amdhsa_system_sgpr_workgroup_id_x 1\n.end_amdhsa_kernel\n")

HEAD = '.amdgcn_target "amdgcn-amd-amdhsa--gfx950"\n.text\n'
```

```python
import sys, struct, math
from asmlib import *

def fbits(x):
    return "0x%08x" % struct.unpack("<I", struct.pack("<f", x))[0]

A2_BYTES = 32 * 72 * 4096
AUX_OFF = A2_BYTES
FLAG_OFF = AUX_OFF + 65536
WS_END = FLAG_OFF + 65536
STAMP_OFF = 0xA00000
BUF = [73728, 118784, 28672]
Z_OFF, LANDED_OFF, DRAINED_OFF = 1024, 1536, 1568
LOG2E = 1.4426950408889634
GELU_A = -2.0 * LOG2E * math.sqrt(2.0 / math.pi)
GELU_B = GELU_A * 0.044715
POLL_MAX = 1 << 18

SX, SW, SW2, SWO, SWS, SOUT, SDBG, SM = 28, 32, 36, 40, 44, 48, 52, 56
WAVE, RT, CT, TYPE, STG, M, N, LW = 60, 61, 62, 63, 64, 65, 66, 67
T0, T1, T2, T3, T4, T5 = 68, 69, 70, 71, 72, 73
SBUF, SCNT, SW0, SD5, SSTR, SSTR5, SEX = 74, 75, 76, 77, 78, 79, 80
SK0, SK1, SWR, SWC = 82, 83, 84, 85
STAMP0 = 86
LANE = 144

def srd(a, d, ptr, size):
    a(f"s_mov_b32 s{d}, s{ptr}\ns_mov_b32 s{d+1}, s{ptr+1}\ns_mov_b32 s{d+2}, {size}\ns_mov_b32 s{d+3}, 0x00020000")

def R(d, n=4):
    return f"s[{d}:{d+n-1}]"

def vr(b, n=1, t="v"):
    return f"{t}{b}" if n == 1 else f"{t}[{b}:{b+n-1}]"

class Gen:
    def __init__(self, **kw):
        self.o = dict(prof=False, o5=1, o6=3, o7=3, rot=True, cprio=0, lprio=0)
        self.o.update(kw)
        self.a = Asm()
        self.uid = 0

    def lab(self, p):
        self.uid += 1
        return f"{p}_{self.uid}"

    def stamp(self, i):
        if self.o["prof"]:
            self.a(f"s_memtime s[{STAMP0+2*i}:{STAMP0+2*i+1}]\ns_waitcnt lgkmcnt(0)")

    def wreg(self, k):
        return ("v", 96 + 16 * k) if k < 3 else ("a", 16 * (k - 3))

    def prologue(self):
        a = self.a
        a("s_cmp_ge_u32 s2, 0x100\ns_cbranch_scc1 L_END")
        a("s_load_dwordx16 s[4:19], s[0:1], 0\ns_load_dwordx8 s[20:27], s[0:1], 64")
        self.stamp(0)
        a(f"""v_lshrrev_b32 v1, 6, v0
        v_and_b32 v{LANE}, 63, v0
        s_and_b32 s{T0}, s2, 7
        v_readfirstlane_b32 s{WAVE}, v1
        s_lshr_b32 s{T1}, s2, 3
        s_and_b32 s{T2}, s{T1}, 7
        s_lshr_b32 s{T3}, s{T1}, 3
        s_and_b32 s{RT}, s{T0}, 1
        s_lshl_b32 s{RT}, s{RT}, 3
        s_add_u32 s{RT}, s{RT}, s{T2}
        s_and_b32 s{CT}, s{T0}, 6
        s_lshr_b32 s{T4}, s{T3}, 1
        s_add_u32 s{CT}, s{CT}, s{T4}
        s_and_b32 s{TYPE}, s{T3}, 1
        s_lshl_b32 s{STG}, s{T3}, 1
        s_add_u32 s{STG}, s{STG}, s{T2}
        s_and_b32 s{STG}, s{STG}, {7 if self.o['rot'] else 0}
        s_lshl_b32 s{M}, s{T0}, 2
        s_and_b32 s{T4}, s{T1}, 3
        s_add_u32 s{M}, s{M}, s{T4}
        s_lshr_b32 s{N}, s{T1}, 2
        s_and_b32 s{LW}, s{WAVE}, 3
        s_waitcnt lgkmcnt(0)""")
        srd(a, SX, 4, 2097152)
        a(f"s_cmp_ge_u32 s{WAVE}, 4\ns_cbranch_scc1 L_COMPUTE")

    def late_srds(self):
        a = self.a
        srd(a, SWS, 26, hex(STAMP_OFF + 0x40000 if self.o["prof"] else WS_END))
        srd(a, SDBG, 24, 256)
        srd(a, SOUT, 22, 2097152)

    def issue_stage(self, bufreg, mid=None):
        a = self.a
        a(f"s_lshl_b32 s{T0}, s{STG}, 7\ns_mul_i32 s{T1}, s{STG}, s{SSTR5}\ns_mul_i32 s{T2}, s{STG}, s{SSTR}")
        a(f"s_lshl_b32 s{T3}, s{LW}, 12\ns_add_u32 m0, s{bufreg}, s{T3}")
        a(f"s_add_u32 s{STG}, s{STG}, 1")
        for i in range(4):
            a(f"buffer_load_dwordx4 v{2+i}, {R(SX)}, s{T0} offen lds")
            if i < 3:
                a("s_add_u32 m0, m0, 0x400\ns_nop 0")
        a(f"s_add_u32 m0, s{bufreg}, s{SD5}\ns_mov_b64 exec, s[{SEX}:{SEX+1}]")
        a(f"buffer_load_dwordx4 v6, {R(SM)}, s{T1} offen lds")
        a(f"s_add_u32 m0, s{bufreg}, s{SW0}\ns_mov_b64 exec, -1")
        for t in range(6):
            a(f"buffer_load_dwordx4 v{7+t}, {R(SW)}, s{T2} offen lds")
            if t < 5:
                a("s_add_u32 m0, m0, 0x400\ns_nop 0")
            if t == 2 and mid:
                mid()
        a(f"s_and_b32 s{STG}, s{STG}, 7")

    def gate_reads(self):
        a = self.a
        a("ds_read_b128 v[24:27], v13\nds_read_b128 v[28:31], v14 offset:1024")
        a("ds_read_b128 v[32:35], v14 offset:2048\nds_read_b128 v[36:39], v13 offset:3072")
        a("ds_read_b128 v[40:43], v15")

    def gate_dots(self):
        a = self.a
        a("s_waitcnt lgkmcnt(0)")
        for j in range(4):
            for i in range(4):
                a(f"v_dot2c_f32_bf16 v{20+i}, v{24+4*i+j}, v{40+j}")

    def gate_advance(self):
        a = self.a
        a(f"""s_add_u32 s{T4}, s{SCNT}, 45056
        s_cmp_gt_u32 s{T4}, {BUF[1]}
        s_cselect_b32 s{T4}, {BUF[2]}, s{T4}
        s_sub_u32 s{T5}, s{T4}, s{SCNT}
        s_mov_b32 s{SCNT}, s{T4}
        v_add_u32 v13, s{T5}, v13
        v_add_u32 v14, s{T5}, v14
        v_add_u32 v15, 0x80, v15
        v_and_b32 v15, 0x3ff, v15""")

    def next_buf(self):
        a = self.a
        a(f"""s_add_u32 s{SBUF}, s{SBUF}, 45056
        s_cmp_gt_u32 s{SBUF}, {BUF[1]}
        s_cselect_b32 s{SBUF}, {BUF[2]}, s{SBUF}""")

    def w2_dma(self, k, partner):
        a = self.a
        if k < 2:
            s, base, mul = SWO, 32 * k * 1024, 64 * 1024
        else:
            s, base, mul = SW2, 32 * (k - 2) * 1024, 224 * 1024
        if partner:
            base += 4 * mul
        a(f"s_mul_i32 s{T0}, s{LW}, {mul}\ns_lshl_b32 s{T1}, s{LW}, 12")
        a(f"s_add_u32 m0, s{T1}, {4096 + 16384 * k}\ns_add_u32 s{T0}, s{T0}, {base}")
        for i in range(4):
            a(f"buffer_load_dwordx4 v{16+i}, {R(s)}, s{T0} offen lds")
            if i < 3:
                a("s_add_u32 m0, m0, 0x400\ns_nop 0")

    def tr_addr_setup(self):
        a = self.a
        a(f"""v_lshrrev_b32 v150, 2, v{LANE}
        v_and_b32 v151, 3, v{LANE}
        v_lshlrev_b32 v145, 7, v150
        v_lshl_add_u32 v145, v151, 3, v145
        v_bfe_u32 v150, v150, 1, 2
        v_lshl_add_u32 v145, v150, 5, v145
        s_lshl_b32 s{T0}, s{LW}, 12
        s_add_u32 s{T0}, s{T0}, 4096
        v_add_u32 v145, s{T0}, v145
        v_xor_b32 v146, 32, v145
        v_xor_b32 v147, 64, v145
        v_xor_b32 v148, 0x60, v145""")

    def drain(self, k):
        a = self.a
        t, b = self.wreg(k)
        if k in (4, 8):
            for f in range(4):
                a(f"v_add_u32 v{145+f}, 0x10000, v{145+f}")
        for f in range(4):
            for h in range(2):
                a(f"ds_read_b64_tr_b16 {vr(b+4*f+2*h, 2, t)}, v{145+f} offset:{16384*(k%4)+2048*h}")

    def dbg_load(self):
        a = self.a
        a(f"""s_lshr_b32 s{T0}, s{M}, 1
        s_lshl_b32 s{T0}, s{T0}, 4
        s_add_u32 s{SK0}, s{T0}, s{WAVE}
        v_and_b32 v158, 1, v{LANE}
        v_lshlrev_b32 v159, 3, v158
        buffer_load_ubyte v157, v159, {R(SDBG)}, s{SK0} offen sc1""")

    def loader(self):
        a, o = self.a, self.o
        if o["lprio"]:
            a(f"s_setprio {o['lprio']}")
        srd(a, SM, 20, 1024)
        a(f"""s_lshl_b32 s{T0}, s{LW}, 8
        s_mov_b32 m0, s{T0}
        v_lshlrev_b32 v15, 4, v{LANE}
        s_mov_b64 exec, 0xffff
        buffer_load_dwordx4 v15, {R(SM)}, s{T0} offen lds
        s_mov_b64 exec, -1
        v_lshrrev_b32 v16, 3, v{LANE}
        v_lshrrev_b32 v17, 4, v{LANE}
        v_and_b32 v18, 7, v{LANE}
        v_xor_b32 v19, v18, v17
        s_lshl_b32 s{T0}, s{RT}, 7
        s_lshl_b32 s{T1}, s{LW}, 5
        s_add_u32 s{T1}, s{T1}, s{T0}
        v_lshl_add_u32 v2, v16, 1, s{T1}
        v_lshlrev_b32 v2, 10, v2
        v_lshl_add_u32 v2, v19, 4, v2
        v_xor_b32 v4, 64, v2
        v_add_u32 v5, 17408, v2
        v_add_u32 v3, 16384, v4
        v_add_u32 v4, 1024, v4
        s_cmp_eq_u32 s{TYPE}, 1
        s_cbranch_scc1 L_LSET_ATT""")
        srd(a, SW, 12, 1835008)
        srd(a, SM, 12, 1835008)
        a(f"""s_mov_b32 s{SSTR}, 229376
        s_mov_b32 s{SSTR5}, 229376
        s_mov_b64 s[{SEX}:{SEX+1}], -1
        s_mul_i32 s{SD5}, s{LW}, 7168
        s_add_u32 s{SD5}, s{SD5}, 16384
        s_add_u32 s{SW0}, s{SD5}, 1024
        s_mul_i32 s{T0}, s{LW}, {16*3584}
        s_mul_i32 s{T1}, s{CT}, 448
        s_add_u32 s{T0}, s{T0}, s{T1}
        s_movk_i32 s{T1}, 2341
        s_movk_i32 s{T2}, 3584""")
        for i in range(7):
            a(f"""v_add_u32 v20, {64*i}, v{LANE}
            v_mul_u32_u24 v21, s{T1}, v20
            v_lshrrev_b32 v21, 16, v21
            v_mul_u32_u24 v22, 28, v21
            v_sub_u32 v22, v20, v22
            v_lshrrev_b32 v23, 3, v21
            v_lshlrev_b32 v23, 1, v23
            v_xor_b32 v22, v22, v23
            v_mul_u32_u24 v21, s{T2}, v21
            v_lshl_add_u32 v21, v22, 4, v21
            v_add_u32 v{6+i}, s{T0}, v21""")
        a("s_branch L_LSET_DONE")
        a.label("L_LSET_ATT")
        srd(a, SW, 6, 1572864)
        srd(a, SM, 4, 2097152)
        a(f"""s_mov_b32 s{SSTR}, 196608
        s_movk_i32 s{SSTR5}, 128
        s_mov_b32 s{SEX}, -1
        s_mov_b32 s{SEX+1}, 0
        s_lshl_b32 s{SD5}, s{LW}, 9
        s_add_u32 s{SD5}, s{SD5}, 16384
        s_mul_i32 s{SW0}, s{LW}, 6144
        s_add_u32 s{SW0}, s{SW0}, 18432
        s_lshl_b32 s{T1}, s{LW}, 2
        v_add_u32 v20, s{T1}, v16
        v_and_b32 v21, 7, v20
        v_lshlrev_b32 v21, 1, v21
        v_bfe_u32 v22, v20, 3, 1
        s_sub_u32 s{T0}, s{T0}, 16
        v_add3_u32 v21, v21, v22, s{T0}
        v_max_i32 v21, 0, v21
        v_bfe_u32 v22, v20, 1, 3
        v_xor_b32 v22, v22, v18
        v_lshlrev_b32 v21, 10, v21
        v_lshl_add_u32 v6, v22, 4, v21
        s_mul_i32 s{T0}, s{LW}, {16*3072}
        s_lshl_b32 s{T1}, s{CT}, 7
        s_add_u32 s{T0}, s{T0}, s{T1}
        s_movk_i32 s{T2}, 3072
        v_mul_u32_u24 v20, s{T2}, v16
        v_and_b32 v21, 1, v17
        v_lshlrev_b32 v21, 1, v21
        v_xor_b32 v21, v21, v18
        v_lshl_add_u32 v20, v21, 4, v20
        v_add_u32 v7, s{T0}, v20
        v_xor_b32 v20, 64, v20
        v_add_u32 v20, {8*3072}, v20
        v_add_u32 v8, s{T0}, v20
        v_add_u32 v9, 1024, v7
        v_add_u32 v10, 1024, v8
        v_add_u32 v11, 2048, v7
        v_add_u32 v12, 2048, v8""")
        a.label("L_LSET_DONE")
        a(f"v_lshlrev_b32 v14, 7, s{STG}\nv_lshl_add_u32 v15, v19, 4, v14")
        a(f"s_mov_b32 s{SBUF}, {BUF[0]}")
        self.issue_stage(SBUF)
        self.next_buf()
        self.issue_stage(SBUF)
        self.next_buf()
        self.stamp(1)
        a(f"""s_mov_b32 s{SCNT}, {BUF[0]}
        s_lshl_b32 s{T0}, s{LW}, 12
        s_add_u32 s{T0}, s{T0}, {BUF[0]}
        v_lshl_add_u32 v13, v{LANE}, 4, s{T0}
        v_xor_b32 v14, 64, v13
        v_mov_b32 v20, 0
        v_mov_b32 v21, 0
        v_mov_b32 v22, 0
        v_mov_b32 v23, 0
        v_lshlrev_b32 v19, 1, v17
        v_xor_b32 v19, v19, v18
        v_lshlrev_b32 v16, 10, v16
        v_lshl_add_u32 v16, v19, 4, v16
        s_lshl_b32 s{T0}, s{N}, 7
        v_add_u32 v16, s{T0}, v16
        v_add_u32 v17, 8192, v16
        v_add_u32 v18, 16384, v16
        v_add_u32 v19, 24576, v16""")
        srd(a, SW2, 16, 1835008)
        srd(a, SWO, 8, 524288)
        self.late_srds()
        self.tr_addr_setup()
        a(f"s_mov_b32 s{SK1}, 6")
        a.label("L_LLOOP")
        a("s_waitcnt vmcnt(11)\ns_barrier")
        self.gate_reads()
        self.issue_stage(SBUF, mid=self.gate_dots)
        self.next_buf()
        self.gate_advance()
        a(f"s_sub_u32 s{SK1}, s{SK1}, 1\ns_cmp_lg_u32 s{SK1}, 0\ns_cbranch_scc1 L_LLOOP")
        k = 0
        for _ in range(o["o5"]):
            self.w2_dma(k, False); k += 1
        a(f"s_waitcnt vmcnt({11 + 4*k})\ns_barrier")
        self.gate_reads()
        for i in range(o["o6"]):
            self.w2_dma(k, False); k += 1
            if i == 0:
                self.gate_dots()
        self.gate_advance()
        a(f"s_waitcnt vmcnt({4*k})\ns_barrier")
        self.gate_reads()
        self.w2_dma(k, False); k += 1
        self.gate_dots()
        a("s_nop 1")
        for mode in ("quad_perm:[1,0,3,2]", "quad_perm:[2,3,0,1]", "row_half_mirror"):
            for i in range(4):
                a(f"v_add_f32_dpp v{20+i}, v{20+i}, v{20+i} {mode} row_mask:0xf bank_mask:0xf")
        a(f"""v_lshrrev_b32 v24, 1, v{LANE}
        s_lshl_b32 s{T0}, s{LW}, 7
        v_add_u32 v24, s{T0}, v24
        s_mov_b32 s{T0}, 0x01010101
        s_mov_b32 s{T1}, 0x01010101
        s_mov_b64 exec, s[{T0}:{T1}]""")
        for i in range(4):
            a(f"ds_write_b32 v24, v{20+i} offset:{Z_OFF + 32*i}")
        a("s_mov_b64 exec, -1")
        for _ in range(o["o7"] - 1):
            self.w2_dma(k, False); k += 1
        a("s_waitcnt lgkmcnt(0)\ns_barrier")
        self.stamp(2)
        while k < 9:
            self.w2_dma(k, False); k += 1
        for j in range(9):
            a("s_waitcnt vmcnt(32)")
            self.drain(j)
            a("s_waitcnt lgkmcnt(0)")
            self.w2_dma(j, True)
        self.dbg_load()
        a(f"""s_lshl_b32 s{T0}, s{LW}, 2
        v_mov_b32 v24, s{T0}
        v_mov_b32 v25, 1
        s_waitcnt vmcnt(0)
        ds_write_b32 v24, v25 offset:{LANDED_OFF}""")
        self.stamp(3)
        a("s_branch L_P2")

    def compute_common_setup(self):
        a, o = self.a, self.o
        a.label("L_COMPUTE")
        if o["cprio"]:
            a(f"s_setprio {o['cprio']}")
        self.late_srds()
        a(f"""s_lshr_b32 s{SWR}, s{LW}, 1
        s_and_b32 s{SWC}, s{LW}, 1
        s_lshl_b32 s{T0}, s{RT}, 4
        s_lshl_b32 s{T1}, s{TYPE}, 3
        s_add_u32 s{T0}, s{T0}, s{T1}
        s_add_u32 s{SD5}, s{T0}, s{CT}
        s_cmp_lg_u32 s{LW}, 0
        s_cbranch_scc1 L_NOCLR
        v_mov_b32 v2, 0
        v_lshlrev_b32 v1, 2, v{LANE}
        s_mov_b64 exec, 0xffff
        ds_write_b32 v1, v2 offset:{LANDED_OFF}
        s_mov_b64 exec, -1
        s_lshl_b32 s{T0}, s{SD5}, 8
        s_add_u32 s{T0}, s{T0}, {FLAG_OFF}
        buffer_store_dword v2, v1, {R(SWS)}, s{T0} offen sc1
        v_mov_b32 v2, 1
        v_mov_b32 v1, 0
        s_waitcnt vmcnt(0)
        s_mov_b64 exec, 1
        buffer_store_byte v2, v1, {R(SDBG)}, s{SD5} offen sc1
        s_mov_b64 exec, -1""")
        a.label("L_NOCLR")
        a(f"""v_and_b32 v150, 15, v{LANE}
        v_lshrrev_b32 v151, 4, v{LANE}
        v_bfe_u32 v152, v{LANE}, 2, 2
        v_and_b32 v153, 3, v{LANE}
        v_lshrrev_b32 v154, 1, v150
        v_xor_b32 v154, v154, v151
        s_lshl_b32 s{T0}, s{SWR}, 13
        s_add_u32 s{T0}, s{T0}, {BUF[0]}
        v_lshl_add_u32 v128, v150, 7, s{T0}
        v_lshl_add_u32 v128, v154, 4, v128
        v_xor_b32 v129, 64, v128
        s_mov_b32 s{SBUF}, {BUF[0]}
        s_cmp_eq_u32 s{TYPE}, 1
        s_cbranch_scc1 L_C_ATT""")

    def main_loop(self, name, reads, mfmas, addr_regs):
        a = self.a
        a("s_waitcnt lgkmcnt(0)\ns_barrier")
        self.stamp(1)
        for r in reads(0, 0):
            a(r)
        a(f"s_mov_b32 s{SK1}, 8")
        a.label(name)
        a("s_waitcnt lgkmcnt(0)")
        rd = reads(1, 44)
        for i, m in enumerate(mfmas(0)):
            a(m)
            if i < len(rd):
                a(rd[i])
            if i == 20:
                a(f"""s_add_u32 s{T4}, s{SBUF}, 45056
                s_cmp_gt_u32 s{T4}, {BUF[1]}
                s_cselect_b32 s{T4}, {BUF[2]}, s{T4}
                s_sub_u32 s{T5}, s{T4}, s{SBUF}
                s_mov_b32 s{SBUF}, s{T4}
                s_sub_u32 s{SK1}, s{SK1}, 1""")
            if 21 <= i < 21 + len(addr_regs):
                r = addr_regs[i - 21]
                a(f"v_add_u32 v{r}, s{T5}, v{r}")
        a("s_waitcnt lgkmcnt(0)\ns_barrier")
        rd = reads(0, 0)
        for i, m in enumerate(mfmas(44)):
            a(m)
            if i < len(rd):
                a(rd[i])
        a(f"s_cmp_lg_u32 s{SK1}, 0\ns_cbranch_scc1 {name}")
        self.stamp(2)

    def z_reads(self):
        a = self.a
        a(f"""s_lshl_b32 s{T0}, s{SWR}, 8
        v_lshl_add_u32 v136, v150, 2, s{T0}
        v_lshl_add_u32 v137, v{LANE}, 2, s{T0}
        s_waitcnt lgkmcnt(0)""")
        for b in range(4):
            a(f"ds_read_b32 v{132+b}, v136 offset:{Z_OFF + 64*b}")
        a(f"ds_read_b32 v137, v137 offset:{Z_OFF}")
        self.dbg_load()
        a(f"""s_lshl_b32 s{T0}, s{RT}, 1
        s_add_u32 s{T0}, s{T0}, s{SWR}
        s_mul_i32 s{SSTR}, s{T0}, {72*4096}
        v_lshlrev_b32 v145, 4, v{LANE}""")

    def publish(self):
        a = self.a
        a(f"""s_lshl_b32 s{T0}, s{SD5}, 8
        s_lshl_b32 s{T1}, s{SWR}, 7
        s_lshl_b32 s{T2}, s{SWC}, 2
        s_add_u32 s{T0}, s{T0}, s{T1}
        s_add_u32 s{T2}, s{T2}, {FLAG_OFF}
        s_add_u32 s{T0}, s{T0}, s{T2}
        v_mov_b32 v2, 1
        v_mov_b32 v1, 0
        s_waitcnt vmcnt(0)
        s_mov_b64 exec, 1
        buffer_store_dword v2, v1, {R(SWS)}, s{T0} offen sc1
        s_mov_b64 exec, -1""")

    def ffn(self):
        a = self.a
        srd(a, SM, 14, 3584)
        a(f"""s_mul_i32 s{T0}, s{CT}, 448
        s_lshl_b32 s{T1}, s{SWC}, 8
        s_add_u32 s{T1}, s{T1}, s{T0}
        s_lshl_b32 s{T2}, s{SWC}, 5
        s_add_u32 s{T2}, s{T2}, s{T0}
        v_lshlrev_b32 v155, 3, v151""")
        for j in range(6):
            a(f"buffer_load_dwordx2 v[{112+2*j}:{113+2*j}], v155, {R(SM)}, s{T1} offen offset:{32*j}")
        a(f"buffer_load_dwordx2 v[124:125], v155, {R(SM)}, s{T2} offen offset:192")
        a(f"""s_movk_i32 s{T0}, 448
        v_lshl_add_u32 v155, v151, 3, v152
        v_mul_u32_u24 v155, s{T0}, v155
        v_lshl_add_u32 v155, v153, 3, v155
        v_add_u32 v155, {BUF[0] + 16384}, v155
        v_and_b32 v156, 1, v151
        s_lshl_b32 s{T1}, s{SWC}, 8
        v_lshl_add_u32 v130, v156, 5, v155
        v_add_u32 v130, s{T1}, v130
        v_xor_b32 v157, 1, v156
        v_lshl_add_u32 v131, v157, 5, v155
        v_add_u32 v131, s{T1}, v131
        v_xor_b32 v157, s{SWC}, v156
        v_lshl_add_u32 v132, v157, 5, v155
        s_waitcnt vmcnt(0)""")
        for j in range(7):
            for b in range(4):
                d = 16 * j + 4 * b
                a(f"""v_lshlrev_b32 v{d}, 16, v{112+2*j}
                v_and_b32 v{d+1}, 0xffff0000, v{112+2*j}
                v_lshlrev_b32 v{d+2}, 16, v{113+2*j}
                v_and_b32 v{d+3}, 0xffff0000, v{113+2*j}""")

        def reads(ks, fb):
            out = []
            for b in range(4):
                out.append(f"ds_read_b128 a[{fb+4*b}:{fb+4*b+3}], v{128 + (ks ^ (b & 1))} offset:{2048*b}")
            for j in range(7):
                reg, off = (132, 192) if j == 6 else (130 + (j & 1), 32 * (j & ~1))
                for h in range(2):
                    d = fb + 16 + 4 * j + 2 * h
                    out.append(f"ds_read_b64_tr_b16 a[{d}:{d+1}], v{reg} offset:{448*(32*ks+4*h) + off}")
            return out

        def mfmas(fb):
            return [f"v_mfma_f32_16x16x32_bf16 v[{16*j+4*b}:{16*j+4*b+3}], a[{fb+16+4*j}:{fb+19+4*j}], "
                    f"a[{fb+4*b}:{fb+4*b+3}], v[{16*j+4*b}:{16*j+4*b+3}]" for j in range(7) for b in range(4)]

        self.main_loop("L_FLOOP", reads, mfmas, [128, 129, 130, 131, 132])
        self.z_reads()
        a(f"""s_mul_i32 s{T0}, s{CT}, {7*4096}
        s_add_u32 s{SSTR}, s{SSTR}, s{T0}
        s_lshl_b32 s{T0}, s{SWC}, 14
        s_add_u32 s{SSTR5}, s{SSTR}, s{T0}
        s_lshl_b32 s{T0}, s{SWC}, 11
        s_add_u32 s{SSTR}, s{SSTR}, s{T0}
        s_add_u32 s{SSTR}, s{SSTR}, {3*4096}
        s_mov_b32 s{T4}, {fbits(GELU_B)}
        s_mov_b32 s{T5}, {fbits(GELU_B)}
        v_mov_b32 v138, {fbits(GELU_A)}
        v_mov_b32 v139, {fbits(GELU_A)}
        s_mov_b32 s{T2}, {fbits(LOG2E)}
        s_mov_b32 s{T3}, {fbits(1e30)}
        s_waitcnt lgkmcnt(0)""")
        for r in (132, 133, 134, 135, 137):
            a(f"v_mul_f32 v{r}, s{T2}, v{r}")
        for r in (132, 133, 134, 135, 137):
            a(f"v_exp_f32 v{r}, v{r}")
        a("s_nop 0")
        for r in (132, 133, 134, 135, 137):
            a(f"v_add_f32 v{r}, 1.0, v{r}")
        for r in (132, 133, 134, 135):
            a(f"v_min_f32 v{r}, s{T3}, v{r}")
        a(f"""v_rcp_f32 v137, v137
        s_lshl_b32 s{T0}, s{RT}, 3
        s_add_u32 s{T0}, s{T0}, s{CT}
        s_lshl_b32 s{T0}, s{T0}, 9
        s_lshl_b32 s{T1}, s{SWR}, 8
        s_add_u32 s{T0}, s{T0}, s{T1}
        s_add_u32 s{T0}, s{T0}, {AUX_OFF}
        v_lshlrev_b32 v136, 2, v{LANE}
        s_cmp_lg_u32 s{SWC}, 0
        s_cbranch_scc1 L_NOAUX
        buffer_store_dword v137, v136, {R(SWS)}, s{T0} offen sc1""")
        a.label("L_NOAUX")
        units = []
        for p in range(3):
            for b in range(4):
                units.append(([(16 * (2 * p) + 4 * b, b), (16 * (2 * p + 1) + 4 * b, b)], SSTR5, 1024 * b, p))
        for q in range(2):
            units.append(([(96 + 8 * q, 2 * q), (96 + 8 * q + 4, 2 * q + 1)], SSTR, 1024 * q, None))
        for u, (blks, sreg, off, p) in enumerate(units):
            t = 112 + 8 * (u & 1)
            pr = [(x + 2 * h, t + 4 * i + 2 * h, b) for i, (x, b) in enumerate(blks) for h in range(2)]
            for x, y, b in pr:
                a(f"v_pk_mul_f32 v[{y}:{y+1}], v[{x}:{x+1}], v[{x}:{x+1}]")
            for x, y, b in pr:
                a(f"v_pk_fma_f32 v[{y}:{y+1}], v[{y}:{y+1}], s[{T4}:{T5}], v[138:139]")
            for x, y, b in pr:
                a(f"v_pk_mul_f32 v[{y}:{y+1}], v[{y}:{y+1}], v[{x}:{x+1}]")
            for i in range(8):
                a(f"v_exp_f32 v{t+i}, v{t+i}")
            for x, y, b in pr:
                c = 132 + (b & ~1)
                s = b & 1
                a(f"v_pk_fma_f32 v[{y}:{y+1}], v[{y}:{y+1}], v[{c}:{c+1}], v[{c}:{c+1}] op_sel:[0,{s},{s}] op_sel_hi:[1,{s},{s}]")
            for i in range(8):
                a(f"v_rcp_f32 v{t+i}, v{t+i}")
            for x, y, b in pr:
                a(f"v_pk_mul_f32 v[{y}:{y+1}], v[{y}:{y+1}], v[{x}:{x+1}]")
            d = 140 if (u & 1) else 128
            for i in range(4):
                a(f"v_cvt_pk_bf16_f32 v{d+i}, v{t+2*i}, v{t+2*i+1}")
            a(f"buffer_store_dwordx4 v[{d}:{d+3}], v145, {R(SWS)}, s{sreg} offen offset:{off} sc1")
            if p is not None and off == 3072 and p < 2:
                a(f"s_add_u32 s{SSTR5}, s{SSTR5}, 4096")
        a("s_branch L_CDONE")

    def att(self):
        a = self.a
        a.label("L_C_ATT")
        a(f"""v_lshrrev_b32 v155, 1, v151
        v_mul_u32_u24 v155, 6144, v155
        v_and_b32 v156, 1, v151
        v_lshl_add_u32 v155, v156, 10, v155
        v_lshl_add_u32 v155, v152, 7, v155
        v_lshl_add_u32 v155, v153, 3, v155
        v_add_u32 v155, {BUF[0] + 18432}, v155
        v_lshrrev_b32 v157, 1, v152
        v_lshl_or_b32 v157, v156, 1, v157
        s_lshl_b32 s{T0}, s{SWC}, 1
        v_xor_b32 v157, s{T0}, v157
        v_lshl_add_u32 v130, v157, 5, v155
        v_xor_b32 v131, 32, v130
        v_add_u32 v155, 128, v150
        v_lshrrev_b32 v156, 3, v150
        v_lshl_add_u32 v156, v156, 3, v150
        v_add_u32 v156, 40, v156
        s_cmp_eq_u32 s{SWR}, 1
        s_cselect_b64 vcc, -1, 0
        v_cndmask_b32 v155, v155, v156, vcc
        v_bfe_u32 v156, v155, 1, 3
        v_bfe_u32 v157, v155, 4, 1
        v_lshlrev_b32 v157, 2, v157
        v_xor_b32 v156, v156, v157
        v_xor_b32 v156, v156, v151
        v_lshlrev_b32 v155, 7, v155
        v_lshl_add_u32 v155, v156, 4, v155
        v_add_u32 v132, {BUF[0]}, v155
        v_xor_b32 v133, 64, v132
        v_mov_b32 v155, {fbits(-1e30)}
        v_lshlrev_b32 v156, 2, v151
        v_sub_u32 v156, v150, v156
        s_or_b32 s{T0}, s{RT}, s{SWR}
        s_cmp_lg_u32 s{T0}, 0
        s_cselect_b64 s[{T2}:{T3}], -1, 0""")
        for r in range(4):
            a(f"""v_subrev_u32 v157, {r}, v156
            v_cmp_gt_u32 vcc, 8, v157
            s_nop 1
            v_cndmask_b32 v{112+r}, v155, 0, vcc
            v_cmp_ge_i32 vcc, -9, v157
            s_nop 1
            v_cndmask_b32 v{116+r}, v155, 0, vcc
            s_and_b64 vcc, vcc, s[{T2}:{T3}]
            v_cndmask_b32 v{120+r}, v155, 0, vcc
            v_cmp_ge_i32 vcc, -1, v157
            s_and_b64 vcc, vcc, s[{T2}:{T3}]
            s_mov_b32 vcc_hi, 0
            v_cndmask_b32 v{124+r}, v155, 0, vcc""")
        for i in range(112):
            a(f"v_mov_b32 v{i}, 0")
        Q = lambda hh, b: 16 * hh + 4 * b
        K = lambda hh, b: 32 + 20 * hh + 4 * b
        vpos = {3: 0, 1: 1, 4: 2, 0: 3, 2: 4}
        V = lambda hh, b: 72 + 20 * hh + 4 * vpos[b]

        def reads(ks, fb):
            out = []
            for b in range(4):
                out.append(f"ds_read_b128 a[{fb+4*b}:{fb+4*b+3}], v{128 + (ks ^ (b & 1))} offset:{2048*b}")
            out.append(f"ds_read_b128 a[{fb+16}:{fb+19}], v{132 + ks}")
            for seg in range(3):
                for hh in range(2):
                    for h in range(2):
                        d = fb + 20 + 8 * seg + 4 * hh + 2 * h
                        out.append(f"ds_read_b64_tr_b16 a[{d}:{d+1}], v{130+hh} offset:{12288*ks + 2048*seg + 512*h}")
            return out

        def mfmas(fb):
            out = []
            for seg, fn, nb in ((0, Q, 4), (1, K, 5), (2, V, 5)):
                for hh in range(2):
                    w = fb + 20 + 8 * seg + 4 * hh
                    for b in range(nb):
                        d, x = fn(hh, b), fb + 4 * b
                        p, q = (w, x) if seg < 2 else (x, w)
                        out.append(f"v_mfma_f32_16x16x32_bf16 v[{d}:{d+3}], a[{p}:{p+3}], a[{q}:{q+3}], v[{d}:{d+3}]")
            return out

        self.main_loop("L_ALOOP", reads, mfmas, [128, 129, 130, 131, 132, 133])
        self.z_reads()
        a(f"""s_lshl_b32 s{T0}, s{CT}, 1
        s_add_u32 s{T0}, s{T0}, s{SWC}
        s_add_u32 s{T0}, s{T0}, 56
        s_lshl_b32 s{T0}, s{T0}, 12
        s_add_u32 s{SSTR}, s{SSTR}, s{T0}
        s_mov_b32 s{T2}, {fbits(-LOG2E)}
        s_mov_b32 s{T4}, {fbits(0.25*LOG2E)}
        s_mov_b32 s{T5}, {fbits(0.25*LOG2E)}""")
        for base, n in ((0, 16), (32, 10), (52, 10), (72, 10), (92, 10)):
            for i in range(n):
                a(f"v_cvt_pk_bf16_f32 v{base+i}, v{base+2*i}, v{base+2*i+1}")
        a("s_waitcnt lgkmcnt(0)")
        for r in range(132, 136):
            a(f"v_mul_f32 v{r}, s{T2}, v{r}")
        for r in range(132, 136):
            a(f"v_exp_f32 v{r}, v{r}")
        for i in range(4):
            a(f"v_mov_b32 v{128+i}, 0x3f803f80")
        for r in range(132, 136):
            a(f"v_add_f32 v{r}, 1.0, v{r}")
        Qp = lambda hh, b: 8 * hh + 2 * b
        Kp = lambda hh, b: 32 + 20 * hh + 2 * b
        Vp = lambda hh, b: 72 + 20 * hh + 2 * vpos[b]
        prev = {0: 4, 1: 4, 2: 0, 3: 1}
        pmask = {0: 124, 1: 120, 2: 116, 3: 116}
        S = [16, 24, 42, 62]
        MX = [50, 70, 82, 102]
        OO = [84, 88, 104, 108]
        SUM = [136, 140, 146, 150]
        for hh in range(2):
            for b in range(4):
                cur, prv = (S[b] + 4, S[b]) if b in (0, 2) else (S[b], S[b] + 4)
                q = Qp(hh, b)
                k = Kp(hh, b)
                a(f"v_mfma_f32_16x16x16_bf16 v[{cur}:{cur+3}], v[{k}:{k+1}], v[{q}:{q+1}], v[112:115]")
                k = Kp(hh, prev[b])
                a(f"v_mfma_f32_16x16x16_bf16 v[{prv}:{prv+3}], v[{k}:{k+1}], v[{q}:{q+1}], v[{pmask[b]}:{pmask[b]+3}]")
            a("s_nop 7")
            for b in range(4):
                s, m = S[b], MX[b]
                a(f"v_max3_f32 v{m}, v{s}, v{s+1}, v{s+2}\nv_max3_f32 v{m+1}, v{s+3}, v{s+4}, v{s+5}")
            for b in range(4):
                s, m = S[b], MX[b]
                a(f"v_max3_f32 v{m}, v{m}, v{s+6}, v{s+7}")
            for b in range(4):
                m = MX[b]
                a(f"v_max_f32 v{m}, v{m}, v{m+1}")
            for sw in ("v_permlane16_swap_b32", "v_permlane32_swap_b32"):
                for b in range(4):
                    a(f"v_mov_b32 v{MX[b]+1}, v{MX[b]}")
                a("s_nop 1")
                for b in range(4):
                    a(f"{sw} v{MX[b]+1}, v{MX[b]}")
                a("s_nop 1")
                for b in range(4):
                    a(f"v_max_f32 v{MX[b]}, v{MX[b]}, v{MX[b]+1}")
            for b in range(4):
                a(f"v_mul_f32 v{MX[b]}, s{T4}, v{MX[b]}")
            for b in range(4):
                s, m = S[b], MX[b]
                for i in range(4):
                    a(f"v_pk_fma_f32 v[{s+2*i}:{s+2*i+1}], v[{s+2*i}:{s+2*i+1}], s[{T4}:{T5}], v[{m}:{m+1}] "
                      f"op_sel_hi:[1,1,0] neg_lo:[0,0,1] neg_hi:[0,0,1]")
            for b in range(4):
                for i in range(8):
                    a(f"v_exp_f32 v{S[b]+i}, v{S[b]+i}")
            a("s_nop 0")
            for b in range(4):
                for i in range(4):
                    a(f"v_cvt_pk_bf16_f32 v{S[b]+i}, v{S[b]+2*i}, v{S[b]+2*i+1}")
            a("s_nop 1")
            for b in range(4):
                s = S[b]
                v = min(Vp(hh, b), Vp(hh, prev[b]))
                a(f"v_mfma_f32_16x16x32_bf16 v[{SUM[b]}:{SUM[b]+3}], v[128:131], v[{s}:{s+3}], 0")
                a(f"v_mfma_f32_16x16x32_bf16 v[{OO[b]}:{OO[b]+3}], v[{v}:{v+3}], v[{s}:{s+3}], 0")
            a("s_nop 7")
            for b in range(4):
                a(f"v_mul_f32 v{SUM[b]}, v{SUM[b]}, v{132+b}")
            for b in range(4):
                a(f"v_rcp_f32 v{SUM[b]}, v{SUM[b]}")
            a("s_nop 0")
            for b in range(4):
                for i in range(2):
                    x = OO[b] + 2 * i
                    a(f"v_pk_mul_f32 v[{x}:{x+1}], v[{x}:{x+1}], v[{SUM[b]}:{SUM[b]+1}] op_sel_hi:[1,0]")
            if hh == 0:
                for b in range(4):
                    for i in range(2):
                        a(f"v_cvt_pk_bf16_f32 v{2*b+i}, v{OO[b]+2*i}, v{OO[b]+2*i+1}")
            else:
                for b in range(4):
                    s = S[b]
                    a(f"v_mov_b32 v{s}, v{2*b}\nv_mov_b32 v{s+1}, v{2*b+1}")
                    for i in range(2):
                        a(f"v_cvt_pk_bf16_f32 v{s+2+i}, v{OO[b]+2*i}, v{OO[b]+2*i+1}")
                    a(f"buffer_store_dwordx4 v[{s}:{s+3}], v145, {R(SWS)}, s{SSTR} offen offset:{1024*b} sc1")

    def lds_wait(self, off):
        a = self.a
        l1, l2 = self.lab("L_LW"), self.lab("L_LWX")
        a(f"s_lshl_b32 s{T0}, s{LW}, 2\nv_mov_b32 v150, s{T0}\ns_mov_b32 s{T1}, {POLL_MAX}")
        a.label(l1)
        a(f"""ds_read_b32 v151, v150 offset:{off}
        s_sub_u32 s{T1}, s{T1}, 1
        s_cbranch_scc1 {l2}
        s_waitcnt lgkmcnt(0)
        v_cmp_eq_u32 vcc, 1, v151
        s_cbranch_vccz {l1}""")
        a.label(l2)

    def compute_tail(self):
        a = self.a
        a.label("L_CDONE")
        self.stamp(3)
        self.publish()
        self.tr_addr_setup()
        self.lds_wait(LANDED_OFF)
        for j in range(9):
            self.drain(j)
        a(f"v_mov_b32 v151, 1\ns_waitcnt lgkmcnt(0)\nds_write_b32 v150, v151 offset:{DRAINED_OFF}")

    def poll(self, load, first_loaded=False):
        a = self.a
        l1, l2, l3 = self.lab("L_PL"), self.lab("L_PLX"), self.lab("L_PLC")
        a(f"s_mov_b32 s{T1}, {POLL_MAX}")
        if first_loaded:
            a(f"s_branch {l3}")
        a.label(l1)
        a(load)
        a(f"s_sub_u32 s{T1}, s{T1}, 1\ns_cbranch_scc1 {l2}")
        a.label(l3)
        a(f"""s_waitcnt vmcnt(0)
        v_cmp_ne_u32 vcc, 1, v157
        s_cbranch_vccnz {l1}""")
        a.label(l2)

    def phase2(self):
        a = self.a
        a.label("L_P2")
        self.stamp(4)
        self.poll(f"buffer_load_ubyte v157, v159, {R(SDBG)}, s{SK0} offen sc1", True)
        srd(a, SM, 18, 1024)
        a(f"""s_lshr_b32 s{T0}, s{M}, 1
        s_lshl_b32 s{T0}, s{T0}, 4
        s_add_u32 s{T0}, s{T0}, s{WAVE}
        s_lshl_b32 s{T0}, s{T0}, 8
        s_and_b32 s{T2}, s{M}, 1
        s_lshl_b32 s{T2}, s{T2}, 7
        s_add_u32 s{T0}, s{T0}, s{T2}
        s_add_u32 s{SK0}, s{T0}, {FLAG_OFF}
        s_add_u32 s{SK1}, s{SK0}, 2048
        v_lshlrev_b32 v159, 2, v158
        v_lshlrev_b32 v149, 4, v{LANE}
        v_and_b32 v150, 7, v{LANE}
        v_lshlrev_b32 v150, 4, v150
        s_lshl_b32 s{T2}, s{N}, 7
        buffer_load_dwordx4 v[152:155], v150, {R(SM)}, s{T2} offen
        s_mul_i32 s{SSTR}, s{M}, {72*4096}
        s_lshl_b32 s{T2}, s{WAVE}, 13
        s_add_u32 s{SSTR5}, s{SSTR}, s{T2}
        s_add_u32 s{SSTR5}, s{SSTR5}, {56*4096}
        s_mul_i32 s{T2}, s{WAVE}, {7*4096}
        s_add_u32 s{SSTR}, s{SSTR}, s{T2}""")
        self.poll(f"buffer_load_dword v157, v159, {R(SWS)}, s{SK1} offen sc1")
        self.stamp(5)
        dest = {0: ("v", 64), 1: ("v", 80), 2: ("v", 64), 3: ("v", 80), 4: ("v", 96), 5: ("v", 112),
                6: ("v", 64), 7: ("v", 128), 8: ("v", 80)}

        def loads(k):
            t, b = dest[k]
            s = SSTR5 if k < 2 else SSTR
            order = [0, 2, 1, 3] if k == 5 else [0, 1, 2, 3]
            for rb in range(4):
                a(f"buffer_load_dwordx4 {vr(b+4*rb, 4, t)}, v149, {R(SWS)}, s{s} offen offset:{1024*order[rb]} sc1")
            a(f"s_add_u32 s{s}, s{s}, 4096")

        def mm(k):
            t, b = dest[k]
            wt, wb = self.wreg(k)
            if k == 5:
                for q in range(2):
                    a(f"v_swap_b32 v{b+8*q+2}, v{b+8*q+4}\nv_swap_b32 v{b+8*q+3}, v{b+8*q+5}")
                a("s_nop 1")
            for rb in range(4):
                for f in range(4):
                    d = 16 * rb + 4 * f
                    c = "0" if k == 0 else f"v[{d}:{d+3}]"
                    a(f"v_mfma_f32_16x16x32_bf16 v[{d}:{d+3}], {vr(wb+4*f, 4, wt)}, {vr(b+4*rb, 4, t)}, {c}")

        loads(0); loads(1)
        a("s_waitcnt vmcnt(4) lgkmcnt(0)")
        mm(0)
        a("s_waitcnt vmcnt(0)")
        mm(1)
        self.poll(f"buffer_load_dword v157, v159, {R(SWS)}, s{SK0} offen sc1")
        self.stamp(6)
        loads(2); loads(3); loads(4); loads(5)
        a(f"""s_lshr_b32 s{T0}, s{M}, 1
        s_lshl_b32 s{T0}, s{T0}, 3
        s_add_u32 s{T0}, s{T0}, s{WAVE}
        s_lshl_b32 s{T0}, s{T0}, 9
        s_and_b32 s{T2}, s{M}, 1
        s_lshl_b32 s{T2}, s{T2}, 8
        s_add_u32 s{T0}, s{T0}, s{T2}
        s_lshl_b32 s{T2}, s{WAVE}, 5
        s_add_u32 s{T0}, s{T0}, s{T2}
        s_add_u32 s{T0}, s{T0}, {AUX_OFF}
        v_lshrrev_b32 v151, 3, v{LANE}
        v_lshlrev_b32 v156, 2, v151
        buffer_load_dword v156, v156, {R(SWS)}, s{T0} offen sc1
        s_waitcnt vmcnt(13)""")
        mm(2)
        loads(6); loads(7)
        a("s_waitcnt vmcnt(17)")
        mm(3)
        loads(8)
        a(f"""v_and_b32 v150, 15, v{LANE}
        v_lshrrev_b32 v151, 4, v{LANE}
        v_and_b32 v157, 2, v151
        v_xor_b32 v150, v150, v157
        v_lshlrev_b32 v150, 4, v150
        v_lshl_add_u32 v150, v151, 8, v150
        s_lshl_b32 s{T0}, s{LW}, 12
        s_add_u32 s{T0}, s{T0}, 4096
        s_cmp_lt_u32 s{WAVE}, 4
        s_cselect_b32 s{T2}, 0x10000, 0
        s_add_u32 s{T0}, s{T0}, s{T2}
        v_add_u32 v145, s{T0}, v150""")
        for f in range(1, 4):
            a(f"v_xor_b32 v{145+f}, {64*f}, v145\nv_add_u32 v{145+f}, {1024*f}, v{145+f}")
        a("s_waitcnt vmcnt(17)")
        mm(4)
        a("s_waitcnt vmcnt(13)")
        mm(5)
        self.lds_wait(DRAINED_OFF)
        a("s_waitcnt vmcnt(8)")
        mm(6)
        a("s_waitcnt vmcnt(4)")
        mm(7)
        a("s_waitcnt vmcnt(0)")
        mm(8)
        self.stamp(7)
        a(f"""v_lshrrev_b32 v150, 3, v{LANE}
        s_and_b32 s{T0}, s{WAVE}, 1
        s_lshl_b32 s{T0}, s{T0}, 3
        v_add_u32 v150, s{T0}, v150
        v_and_b32 v151, 7, v{LANE}
        v_lshlrev_b32 v157, 1, v151
        v_xor_b32 v157, v157, v150
        v_lshlrev_b32 v157, 4, v157
        v_lshl_add_u32 v157, v151, 9, v157
        s_lshr_b32 s{T1}, s{WAVE}, 1
        s_lshl_b32 s{T2}, s{T1}, 14
        s_add_u32 s{T2}, s{T2}, 4096
        v_add_u32 v157, s{T2}, v157
        v_add_u32 v158, 0x10000, v157""")
        for rb in range(4):
            for f in range(4):
                d = 16 * rb + 4 * f
                a(f"ds_write_b128 v{145+f}, v[{d}:{d+3}] offset:{16384*rb}")
        a(f"""s_lshr_b32 s{T2}, s{T1}, 1
        s_lshl_b32 s{T2}, s{T2}, 5
        s_and_b32 s{T1}, s{T1}, 1
        s_add_u32 s{T2}, s{T2}, s{T1}
        s_lshl_b32 s{T1}, s{M}, 6
        s_add_u32 s{T2}, s{T2}, s{T1}
        v_lshl_add_u32 v150, v150, 1, s{T2}
        v_lshlrev_b32 v150, 10, v150
        v_lshl_add_u32 v150, v151, 4, v150
        s_lshl_b32 s{T2}, s{N}, 7""")
        for i in range(4):
            a(f"v_lshlrev_b32 v{64+2*i}, 16, v{152+i}\nv_and_b32 v{65+2*i}, 0xffff0000, v{152+i}")
        for i in range(8):
            a(f"v_mul_f32 v{64+i}, v156, v{64+i}")
        a("s_waitcnt lgkmcnt(0)\ns_barrier")
        for pw in range(8):
            for gg in range(2):
                d = 8 * pw + 4 * gg
                a(f"ds_read_b128 v[{d}:{d+3}], v{157 + (pw >> 2)} offset:{4096*(pw & 3) + 256*gg}")
        for pw in range(8):
            a(f"s_waitcnt lgkmcnt({14 - 2*pw})")
            for i in range(4):
                a(f"v_pk_add_f32 v[{64+2*i}:{65+2*i}], v[{64+2*i}:{65+2*i}], v[{8*pw+2*i}:{8*pw+2*i+1}]")
        for i in range(4):
            a(f"v_cvt_pk_bf16_f32 v{72+i}, v{64+2*i}, v{65+2*i}")
        a(f"buffer_store_dwordx4 v[72:75], v150, {R(SOUT)}, s{T2} offen")
        if self.o["prof"]:
            a(f"s_waitcnt vmcnt(0)\ns_memtime s[4:5]\ns_getreg_b32 s6, hwreg(HW_REG_HW_ID)\ns_waitcnt lgkmcnt(0)")
            a(f"s_lshl_b32 s{T0}, s2, 3\ns_add_u32 s{T0}, s{T0}, s{WAVE}\ns_lshl_b32 s{T0}, s{T0}, 6\ns_add_u32 s{T0}, s{T0}, {STAMP_OFF}")
            a("s_mov_b64 exec, 1\nv_mov_b32 v1, 0")
            for i in range(10):
                src = f"s{STAMP0+2*i}" if i < 8 else ("s4" if i == 8 else "s6")
                a(f"v_mov_b32 v2, {src}\nbuffer_store_dword v2, v1, {R(SWS)}, s{T0} offen offset:{4*i}")
        a.label("L_END")
        a("s_endpgm")

    def build(self):
        self.prologue()
        self.loader()
        self.compute_common_setup()
        self.ffn()
        self.att()
        self.compute_tail()
        self.phase2()
        ref = open(f"cdna_kernels/{KNAME}.s.ref").read().split("\n")
        head = [l for l in ref if l.startswith(";") and "@launch" not in l]
        name = KNAME + "_kernel"
        return ("\n".join(head) + "\n; @launch grid=(256,1,1) block=(512,1,1) lds=163840\n" + HEAD + kernel_open(name)
                + self.a.text() + '.section .rodata,"a"\n.p2align 6\n' + kernel_desc(name, 256, 160))

if __name__ == "__main__":
    out = sys.argv[1]
    kw = {}
    for s in sys.argv[2:]:
        k, v = s.split("=")
        kw[k] = int(v)
    open(out, "w").write(Gen(**kw).build())
```

```python
import sys, struct, math
from asmlib import *

def fbits(x):
    return "0x%08x" % struct.unpack("<I", struct.pack("<f", x))[0]

A2_BYTES = 32 * 72 * 4096
AUX_OFF = A2_BYTES
FLAG_OFF = AUX_OFF + 65536
WS_END = FLAG_OFF + 65536
STAMP_OFF = 0xA00000
BUF = [73728, 118784, 28672]
Z_OFF, LANDED_OFF, DRAINED_OFF = 1024, 1536, 1568
LOG2E = 1.4426950408889634
GELU_A = -2.0 * LOG2E * math.sqrt(2.0 / math.pi)
GELU_B = GELU_A * 0.044715
POLL_MAX = 1 << 18

SX, SW, SW2, SWO, SWS, SOUT, SDBG, SM = 28, 32, 36, 40, 44, 48, 52, 56
WAVE, RT, CT, TYPE, STG, M, N, LW = 60, 61, 62, 63, 64, 65, 66, 67
T0, T1, T2, T3, T4, T5 = 68, 69, 70, 71, 72, 73
SBUF, SCNT, SW0, SD5, SSTR, SSTR5, SEX = 74, 75, 76, 77, 78, 79, 80
SK0, SK1, SWR, SWC = 82, 83, 84, 85
STAMP0 = 86
LANE = 144

def srd(a, d, ptr, size):
    a(f"s_mov_b32 s{d}, s{ptr}\ns_mov_b32 s{d+1}, s{ptr+1}\ns_mov_b32 s{d+2}, {size}\ns_mov_b32 s{d+3}, 0x00020000")

def R(d, n=4):
    return f"s[{d}:{d+n-1}]"

def vr(b, n=1, t="v"):
    return f"{t}{b}" if n == 1 else f"{t}[{b}:{b+n-1}]"

class Gen:
    def __init__(self, **kw):
        self.o = dict(prof=False, o5=1, o6=3, o7=3, rot=True, cprio=0, lprio=0, spin=-1, spinw=1)
        self.o.update(kw)
        self.a = Asm()
        self.uid = 0

    def lab(self, p):
        self.uid += 1
        return f"{p}_{self.uid}"

    def stamp(self, i):
        if self.o["spin"] == i:
            self.a("s_memrealtime s[98:99]\ns_waitcnt lgkmcnt(0)")
        if self.o["prof"]:
            self.a(f"s_memtime s[{STAMP0+2*i}:{STAMP0+2*i+1}]\ns_waitcnt lgkmcnt(0)")

    def wreg(self, k):
        return ("v", 96 + 16 * k) if k < 3 else ("a", 16 * (k - 3))

    def prologue(self):
        a = self.a
        a("s_cmp_ge_u32 s2, 0x100\ns_cbranch_scc1 L_END")
        a("s_load_dwordx16 s[4:19], s[0:1], 0\ns_load_dwordx8 s[20:27], s[0:1], 64")
        self.stamp(0)
        a(f"""v_lshrrev_b32 v1, 6, v0
        v_and_b32 v{LANE}, 63, v0
        s_and_b32 s{T0}, s2, 7
        v_readfirstlane_b32 s{WAVE}, v1
        s_lshr_b32 s{T1}, s2, 3
        s_and_b32 s{T2}, s{T1}, 7
        s_lshr_b32 s{T3}, s{T1}, 3
        s_and_b32 s{RT}, s{T0}, 1
        s_lshl_b32 s{RT}, s{RT}, 3
        s_add_u32 s{RT}, s{RT}, s{T2}
        s_and_b32 s{CT}, s{T0}, 6
        s_lshr_b32 s{T4}, s{T3}, 1
        s_add_u32 s{CT}, s{CT}, s{T4}
        s_and_b32 s{TYPE}, s{T3}, 1
        s_lshl_b32 s{STG}, s{T3}, 1
        s_add_u32 s{STG}, s{STG}, s{T2}
        s_and_b32 s{STG}, s{STG}, {7 if self.o['rot'] else 0}
        s_lshl_b32 s{M}, s{T0}, 2
        s_and_b32 s{T4}, s{T1}, 3
        s_add_u32 s{M}, s{M}, s{T4}
        s_lshr_b32 s{N}, s{T1}, 2
        s_and_b32 s{LW}, s{WAVE}, 3
        s_waitcnt lgkmcnt(0)""")
        srd(a, SX, 4, 2097152)
        a(f"s_cmp_ge_u32 s{WAVE}, 4\ns_cbranch_scc1 L_COMPUTE")

    def late_srds(self):
        a = self.a
        srd(a, SWS, 26, hex(STAMP_OFF + 0x40000 if self.o["prof"] else WS_END))
        srd(a, SDBG, 24, 256)
        srd(a, SOUT, 22, 2097152)

    def issue_stage(self, bufreg, mid=None):
        a = self.a
        a(f"s_lshl_b32 s{T0}, s{STG}, 7\ns_mul_i32 s{T1}, s{STG}, s{SSTR5}\ns_mul_i32 s{T2}, s{STG}, s{SSTR}")
        a(f"s_lshl_b32 s{T3}, s{LW}, 12\ns_add_u32 m0, s{bufreg}, s{T3}")
        a(f"s_add_u32 s{STG}, s{STG}, 1")
        for i in range(4):
            a(f"buffer_load_dwordx4 v{2+i}, {R(SX)}, s{T0} offen lds")
            if i < 3:
                a("s_add_u32 m0, m0, 0x400\ns_nop 0")
        a(f"s_add_u32 m0, s{bufreg}, s{SD5}\ns_mov_b64 exec, s[{SEX}:{SEX+1}]")
        a(f"buffer_load_dwordx4 v6, {R(SM)}, s{T1} offen lds")
        a(f"s_add_u32 m0, s{bufreg}, s{SW0}\ns_mov_b64 exec, -1")
        for t in range(6):
            a(f"buffer_load_dwordx4 v{7+t}, {R(SW)}, s{T2} offen lds")
            if t < 5:
                a("s_add_u32 m0, m0, 0x400\ns_nop 0")
            if t == 2 and mid:
                mid()
        a(f"s_and_b32 s{STG}, s{STG}, 7")

    def gate_reads(self):
        a = self.a
        a("ds_read_b128 v[24:27], v13\nds_read_b128 v[28:31], v14 offset:1024")
        a("ds_read_b128 v[32:35], v14 offset:2048\nds_read_b128 v[36:39], v13 offset:3072")
        a("ds_read_b128 v[40:43], v15")

    def gate_dots(self):
        a = self.a
        a("s_waitcnt lgkmcnt(0)")
        for j in range(4):
            for i in range(4):
                a(f"v_dot2c_f32_bf16 v{20+i}, v{24+4*i+j}, v{40+j}")

    def gate_advance(self):
        a = self.a
        a(f"""s_add_u32 s{T4}, s{SCNT}, 45056
        s_cmp_gt_u32 s{T4}, {BUF[1]}
        s_cselect_b32 s{T4}, {BUF[2]}, s{T4}
        s_sub_u32 s{T5}, s{T4}, s{SCNT}
        s_mov_b32 s{SCNT}, s{T4}
        v_add_u32 v13, s{T5}, v13
        v_add_u32 v14, s{T5}, v14
        v_add_u32 v15, 0x80, v15
        v_and_b32 v15, 0x3ff, v15""")

    def next_buf(self):
        a = self.a
        a(f"""s_add_u32 s{SBUF}, s{SBUF}, 45056
        s_cmp_gt_u32 s{SBUF}, {BUF[1]}
        s_cselect_b32 s{SBUF}, {BUF[2]}, s{SBUF}""")

    def w2_dma(self, k, partner):
        a = self.a
        if k < 2:
            s, base, mul = SWO, 32 * k * 1024, 64 * 1024
        else:
            s, base, mul = SW2, 32 * (k - 2) * 1024, 224 * 1024
        if partner:
            base += 4 * mul
        a(f"s_mul_i32 s{T0}, s{LW}, {mul}\ns_lshl_b32 s{T1}, s{LW}, 12")
        a(f"s_add_u32 m0, s{T1}, {4096 + 16384 * k}\ns_add_u32 s{T0}, s{T0}, {base}")
        for i in range(4):
            a(f"buffer_load_dwordx4 v{16+i}, {R(s)}, s{T0} offen lds")
            if i < 3:
                a("s_add_u32 m0, m0, 0x400\ns_nop 0")

    def tr_addr_setup(self):
        a = self.a
        a(f"""v_lshrrev_b32 v150, 2, v{LANE}
        v_and_b32 v151, 3, v{LANE}
        v_lshlrev_b32 v145, 7, v150
        v_lshl_add_u32 v145, v151, 3, v145
        v_bfe_u32 v150, v150, 1, 2
        v_lshl_add_u32 v145, v150, 5, v145
        s_lshl_b32 s{T0}, s{LW}, 12
        s_add_u32 s{T0}, s{T0}, 4096
        v_add_u32 v145, s{T0}, v145
        v_xor_b32 v146, 32, v145
        v_xor_b32 v147, 64, v145
        v_xor_b32 v148, 0x60, v145""")

    def drain(self, k):
        a = self.a
        t, b = self.wreg(k)
        if k in (4, 8):
            for f in range(4):
                a(f"v_add_u32 v{145+f}, 0x10000, v{145+f}")
        for f in range(4):
            for h in range(2):
                a(f"ds_read_b64_tr_b16 {vr(b+4*f+2*h, 2, t)}, v{145+f} offset:{16384*(k%4)+2048*h}")

    def dbg_load(self):
        a = self.a
        a(f"""s_lshr_b32 s{T0}, s{M}, 1
        s_lshl_b32 s{T0}, s{T0}, 4
        s_add_u32 s{SK0}, s{T0}, s{WAVE}
        v_and_b32 v158, 1, v{LANE}
        v_lshlrev_b32 v159, 3, v158
        buffer_load_ubyte v157, v159, {R(SDBG)}, s{SK0} offen sc1""")

    def loader(self):
        a, o = self.a, self.o
        if o["lprio"]:
            a(f"s_setprio {o['lprio']}")
        srd(a, SM, 20, 1024)
        a(f"""s_lshl_b32 s{T0}, s{LW}, 8
        s_mov_b32 m0, s{T0}
        v_lshlrev_b32 v15, 4, v{LANE}
        s_mov_b64 exec, 0xffff
        buffer_load_dwordx4 v15, {R(SM)}, s{T0} offen lds
        s_mov_b64 exec, -1
        v_lshrrev_b32 v16, 3, v{LANE}
        v_lshrrev_b32 v17, 4, v{LANE}
        v_and_b32 v18, 7, v{LANE}
        v_xor_b32 v19, v18, v17
        s_lshl_b32 s{T0}, s{RT}, 7
        s_lshl_b32 s{T1}, s{LW}, 5
        s_add_u32 s{T1}, s{T1}, s{T0}
        v_lshl_add_u32 v2, v16, 1, s{T1}
        v_lshlrev_b32 v2, 10, v2
        v_lshl_add_u32 v2, v19, 4, v2
        v_xor_b32 v4, 64, v2
        v_add_u32 v5, 17408, v2
        v_add_u32 v3, 16384, v4
        v_add_u32 v4, 1024, v4
        s_cmp_eq_u32 s{TYPE}, 1
        s_cbranch_scc1 L_LSET_ATT""")
        srd(a, SW, 12, 1835008)
        srd(a, SM, 12, 1835008)
        a(f"""s_mov_b32 s{SSTR}, 229376
        s_mov_b32 s{SSTR5}, 229376
        s_mov_b64 s[{SEX}:{SEX+1}], -1
        s_mul_i32 s{SD5}, s{LW}, 7168
        s_add_u32 s{SD5}, s{SD5}, 16384
        s_add_u32 s{SW0}, s{SD5}, 1024
        s_mul_i32 s{T0}, s{LW}, {16*3584}
        s_mul_i32 s{T1}, s{CT}, 448
        s_add_u32 s{T0}, s{T0}, s{T1}
        s_movk_i32 s{T1}, 2341
        s_movk_i32 s{T2}, 3584""")
        for i in range(7):
            a(f"""v_add_u32 v20, {64*i}, v{LANE}
            v_mul_u32_u24 v21, s{T1}, v20
            v_lshrrev_b32 v21, 16, v21
            v_mul_u32_u24 v22, 28, v21
            v_sub_u32 v22, v20, v22
            v_lshrrev_b32 v23, 3, v21
            v_lshlrev_b32 v23, 1, v23
            v_xor_b32 v22, v22, v23
            v_mul_u32_u24 v21, s{T2}, v21
            v_lshl_add_u32 v21, v22, 4, v21
            v_add_u32 v{6+i}, s{T0}, v21""")
        a("s_branch L_LSET_DONE")
        a.label("L_LSET_ATT")
        srd(a, SW, 6, 1572864)
        srd(a, SM, 4, 2097152)
        a(f"""s_mov_b32 s{SSTR}, 196608
        s_movk_i32 s{SSTR5}, 128
        s_mov_b32 s{SEX}, -1
        s_mov_b32 s{SEX+1}, 0
        s_lshl_b32 s{SD5}, s{LW}, 9
        s_add_u32 s{SD5}, s{SD5}, 16384
        s_mul_i32 s{SW0}, s{LW}, 6144
        s_add_u32 s{SW0}, s{SW0}, 18432
        s_lshl_b32 s{T1}, s{LW}, 2
        v_add_u32 v20, s{T1}, v16
        v_and_b32 v21, 7, v20
        v_lshlrev_b32 v21, 1, v21
        v_bfe_u32 v22, v20, 3, 1
        s_sub_u32 s{T0}, s{T0}, 16
        v_add3_u32 v21, v21, v22, s{T0}
        v_max_i32 v21, 0, v21
        v_bfe_u32 v22, v20, 1, 3
        v_xor_b32 v22, v22, v18
        v_lshlrev_b32 v21, 10, v21
        v_lshl_add_u32 v6, v22, 4, v21
        s_mul_i32 s{T0}, s{LW}, {16*3072}
        s_lshl_b32 s{T1}, s{CT}, 7
        s_add_u32 s{T0}, s{T0}, s{T1}
        s_movk_i32 s{T2}, 3072
        v_mul_u32_u24 v20, s{T2}, v16
        v_and_b32 v21, 1, v17
        v_lshlrev_b32 v21, 1, v21
        v_xor_b32 v21, v21, v18
        v_lshl_add_u32 v20, v21, 4, v20
        v_add_u32 v7, s{T0}, v20
        v_xor_b32 v20, 64, v20
        v_add_u32 v20, {8*3072}, v20
        v_add_u32 v8, s{T0}, v20
        v_add_u32 v9, 1024, v7
        v_add_u32 v10, 1024, v8
        v_add_u32 v11, 2048, v7
        v_add_u32 v12, 2048, v8""")
        a.label("L_LSET_DONE")
        a(f"v_lshlrev_b32 v14, 7, s{STG}\nv_lshl_add_u32 v15, v19, 4, v14")
        a(f"s_mov_b32 s{SBUF}, {BUF[0]}")
        self.issue_stage(SBUF)
        self.next_buf()
        self.issue_stage(SBUF)
        self.next_buf()
        self.stamp(1)
        a(f"""s_mov_b32 s{SCNT}, {BUF[0]}
        s_lshl_b32 s{T0}, s{LW}, 12
        s_add_u32 s{T0}, s{T0}, {BUF[0]}
        v_lshl_add_u32 v13, v{LANE}, 4, s{T0}
        v_xor_b32 v14, 64, v13
        v_mov_b32 v20, 0
        v_mov_b32 v21, 0
        v_mov_b32 v22, 0
        v_mov_b32 v23, 0
        v_lshlrev_b32 v19, 1, v17
        v_xor_b32 v19, v19, v18
        v_lshlrev_b32 v16, 10, v16
        v_lshl_add_u32 v16, v19, 4, v16
        s_lshl_b32 s{T0}, s{N}, 7
        v_add_u32 v16, s{T0}, v16
        v_add_u32 v17, 8192, v16
        v_add_u32 v18, 16384, v16
        v_add_u32 v19, 24576, v16""")
        srd(a, SW2, 16, 1835008)
        srd(a, SWO, 8, 524288)
        self.late_srds()
        self.tr_addr_setup()
        a(f"s_mov_b32 s{SK1}, 6")
        a.label("L_LLOOP")
        a("s_waitcnt vmcnt(11)\ns_barrier")
        self.gate_reads()
        self.issue_stage(SBUF, mid=self.gate_dots)
        self.next_buf()
        self.gate_advance()
        a(f"s_sub_u32 s{SK1}, s{SK1}, 1\ns_cmp_lg_u32 s{SK1}, 0\ns_cbranch_scc1 L_LLOOP")
        k = 0
        for _ in range(o["o5"]):
            self.w2_dma(k, False); k += 1
        a(f"s_waitcnt vmcnt({11 + 4*k})\ns_barrier")
        self.gate_reads()
        for i in range(o["o6"]):
            self.w2_dma(k, False); k += 1
            if i == 0:
                self.gate_dots()
        self.gate_advance()
        a(f"s_waitcnt vmcnt({4*k})\ns_barrier")
        self.gate_reads()
        self.w2_dma(k, False); k += 1
        self.gate_dots()
        a("s_nop 1")
        for mode in ("quad_perm:[1,0,3,2]", "quad_perm:[2,3,0,1]", "row_half_mirror"):
            for i in range(4):
                a(f"v_add_f32_dpp v{20+i}, v{20+i}, v{20+i} {mode} row_mask:0xf bank_mask:0xf")
        a(f"""v_lshrrev_b32 v24, 1, v{LANE}
        s_lshl_b32 s{T0}, s{LW}, 7
        v_add_u32 v24, s{T0}, v24
        s_mov_b32 s{T0}, 0x01010101
        s_mov_b32 s{T1}, 0x01010101
        s_mov_b64 exec, s[{T0}:{T1}]""")
        for i in range(4):
            a(f"ds_write_b32 v24, v{20+i} offset:{Z_OFF + 32*i}")
        a("s_mov_b64 exec, -1")
        for _ in range(o["o7"] - 1):
            self.w2_dma(k, False); k += 1
        a("s_waitcnt lgkmcnt(0)\ns_barrier")
        self.stamp(2)
        while k < 9:
            self.w2_dma(k, False); k += 1
        for j in range(9):
            a("s_waitcnt vmcnt(32)")
            self.drain(j)
            a("s_waitcnt lgkmcnt(0)")
            self.w2_dma(j, True)
        self.dbg_load()
        a(f"""s_lshl_b32 s{T0}, s{LW}, 2
        v_mov_b32 v24, s{T0}
        v_mov_b32 v25, 1
        s_waitcnt vmcnt(0)
        ds_write_b32 v24, v25 offset:{LANDED_OFF}""")
        self.stamp(3)
        a("s_branch L_P2")

    def compute_common_setup(self):
        a, o = self.a, self.o
        a.label("L_COMPUTE")
        if o["cprio"]:
            a(f"s_setprio {o['cprio']}")
        self.late_srds()
        a(f"""s_lshr_b32 s{SWR}, s{LW}, 1
        s_and_b32 s{SWC}, s{LW}, 1
        s_lshl_b32 s{T0}, s{RT}, 4
        s_lshl_b32 s{T1}, s{TYPE}, 3
        s_add_u32 s{T0}, s{T0}, s{T1}
        s_add_u32 s{SD5}, s{T0}, s{CT}
        s_cmp_lg_u32 s{LW}, 0
        s_cbranch_scc1 L_NOCLR
        v_mov_b32 v2, 0
        v_lshlrev_b32 v1, 2, v{LANE}
        s_mov_b64 exec, 0xffff
        ds_write_b32 v1, v2 offset:{LANDED_OFF}
        s_mov_b64 exec, -1
        s_lshl_b32 s{T0}, s{SD5}, 8
        s_add_u32 s{T0}, s{T0}, {FLAG_OFF}
        buffer_store_dword v2, v1, {R(SWS)}, s{T0} offen sc1
        v_mov_b32 v2, 1
        v_mov_b32 v1, 0
        s_waitcnt vmcnt(0)
        s_mov_b64 exec, 1
        buffer_store_byte v2, v1, {R(SDBG)}, s{SD5} offen sc1
        s_mov_b64 exec, -1""")
        a.label("L_NOCLR")
        a(f"""v_and_b32 v150, 15, v{LANE}
        v_lshrrev_b32 v151, 4, v{LANE}
        v_bfe_u32 v152, v{LANE}, 2, 2
        v_and_b32 v153, 3, v{LANE}
        v_lshrrev_b32 v154, 1, v150
        v_xor_b32 v154, v154, v151
        s_lshl_b32 s{T0}, s{SWR}, 13
        s_add_u32 s{T0}, s{T0}, {BUF[0]}
        v_lshl_add_u32 v128, v150, 7, s{T0}
        v_lshl_add_u32 v128, v154, 4, v128
        v_xor_b32 v129, 64, v128
        s_mov_b32 s{SBUF}, {BUF[0]}
        s_cmp_eq_u32 s{TYPE}, 1
        s_cbranch_scc1 L_C_ATT""")

    def main_loop(self, name, reads, mfmas, addr_regs):
        a = self.a
        a("s_waitcnt lgkmcnt(0)\ns_barrier")
        self.stamp(1)
        for r in reads(0, 0):
            a(r)
        a(f"s_mov_b32 s{SK1}, 8")
        a.label(name)
        a("s_waitcnt lgkmcnt(0)")
        rd = reads(1, 44)
        for i, m in enumerate(mfmas(0)):
            a(m)
            if i < len(rd):
                a(rd[i])
            if i == 20:
                a(f"""s_add_u32 s{T4}, s{SBUF}, 45056
                s_cmp_gt_u32 s{T4}, {BUF[1]}
                s_cselect_b32 s{T4}, {BUF[2]}, s{T4}
                s_sub_u32 s{T5}, s{T4}, s{SBUF}
                s_mov_b32 s{SBUF}, s{T4}
                s_sub_u32 s{SK1}, s{SK1}, 1""")
            if 21 <= i < 21 + len(addr_regs):
                r = addr_regs[i - 21]
                a(f"v_add_u32 v{r}, s{T5}, v{r}")
        a("s_waitcnt lgkmcnt(0)\ns_barrier")
        rd = reads(0, 0)
        for i, m in enumerate(mfmas(44)):
            a(m)
            if i < len(rd):
                a(rd[i])
        a(f"s_cmp_lg_u32 s{SK1}, 0\ns_cbranch_scc1 {name}")
        self.stamp(2)

    def z_reads(self):
        a = self.a
        a(f"""s_lshl_b32 s{T0}, s{SWR}, 8
        v_lshl_add_u32 v136, v150, 2, s{T0}
        v_lshl_add_u32 v137, v{LANE}, 2, s{T0}
        s_waitcnt lgkmcnt(0)""")
        for b in range(4):
            a(f"ds_read_b32 v{132+b}, v136 offset:{Z_OFF + 64*b}")
        a(f"ds_read_b32 v137, v137 offset:{Z_OFF}")
        self.dbg_load()
        a(f"""s_lshl_b32 s{T0}, s{RT}, 1
        s_add_u32 s{T0}, s{T0}, s{SWR}
        s_mul_i32 s{SSTR}, s{T0}, {72*4096}
        v_lshlrev_b32 v145, 4, v{LANE}""")

    def publish(self):
        a = self.a
        a(f"""s_lshl_b32 s{T0}, s{SD5}, 8
        s_lshl_b32 s{T1}, s{SWR}, 7
        s_lshl_b32 s{T2}, s{SWC}, 2
        s_add_u32 s{T0}, s{T0}, s{T1}
        s_add_u32 s{T2}, s{T2}, {FLAG_OFF}
        s_add_u32 s{T0}, s{T0}, s{T2}
        v_mov_b32 v2, 1
        v_mov_b32 v1, 0
        s_waitcnt vmcnt(0)
        s_mov_b64 exec, 1
        buffer_store_dword v2, v1, {R(SWS)}, s{T0} offen sc1
        s_mov_b64 exec, -1""")

    def ffn(self):
        a = self.a
        srd(a, SM, 14, 3584)
        a(f"""s_mul_i32 s{T0}, s{CT}, 448
        s_lshl_b32 s{T1}, s{SWC}, 8
        s_add_u32 s{T1}, s{T1}, s{T0}
        s_lshl_b32 s{T2}, s{SWC}, 5
        s_add_u32 s{T2}, s{T2}, s{T0}
        v_lshlrev_b32 v155, 3, v151""")
        for j in range(6):
            a(f"buffer_load_dwordx2 v[{112+2*j}:{113+2*j}], v155, {R(SM)}, s{T1} offen offset:{32*j}")
        a(f"buffer_load_dwordx2 v[124:125], v155, {R(SM)}, s{T2} offen offset:192")
        a(f"""s_movk_i32 s{T0}, 448
        v_lshl_add_u32 v155, v151, 3, v152
        v_mul_u32_u24 v155, s{T0}, v155
        v_lshl_add_u32 v155, v153, 3, v155
        v_add_u32 v155, {BUF[0] + 16384}, v155
        v_and_b32 v156, 1, v151
        s_lshl_b32 s{T1}, s{SWC}, 8
        v_lshl_add_u32 v130, v156, 5, v155
        v_add_u32 v130, s{T1}, v130
        v_xor_b32 v157, 1, v156
        v_lshl_add_u32 v131, v157, 5, v155
        v_add_u32 v131, s{T1}, v131
        v_xor_b32 v157, s{SWC}, v156
        v_lshl_add_u32 v132, v157, 5, v155
        s_waitcnt vmcnt(0)""")
        for j in range(7):
            for b in range(4):
                d = 16 * j + 4 * b
                a(f"""v_lshlrev_b32 v{d}, 16, v{112+2*j}
                v_and_b32 v{d+1}, 0xffff0000, v{112+2*j}
                v_lshlrev_b32 v{d+2}, 16, v{113+2*j}
                v_and_b32 v{d+3}, 0xffff0000, v{113+2*j}""")

        def reads(ks, fb):
            out = []
            for b in range(4):
                out.append(f"ds_read_b128 a[{fb+4*b}:{fb+4*b+3}], v{128 + (ks ^ (b & 1))} offset:{2048*b}")
            for j in range(7):
                reg, off = (132, 192) if j == 6 else (130 + (j & 1), 32 * (j & ~1))
                for h in range(2):
                    d = fb + 16 + 4 * j + 2 * h
                    out.append(f"ds_read_b64_tr_b16 a[{d}:{d+1}], v{reg} offset:{448*(32*ks+4*h) + off}")
            return out

        def mfmas(fb):
            return [f"v_mfma_f32_16x16x32_bf16 v[{16*j+4*b}:{16*j+4*b+3}], a[{fb+16+4*j}:{fb+19+4*j}], "
                    f"a[{fb+4*b}:{fb+4*b+3}], v[{16*j+4*b}:{16*j+4*b+3}]" for j in range(7) for b in range(4)]

        self.main_loop("L_FLOOP", reads, mfmas, [128, 129, 130, 131, 132])
        self.z_reads()
        a(f"""s_mul_i32 s{T0}, s{CT}, {7*4096}
        s_add_u32 s{SSTR}, s{SSTR}, s{T0}
        s_lshl_b32 s{T0}, s{SWC}, 14
        s_add_u32 s{SSTR5}, s{SSTR}, s{T0}
        s_lshl_b32 s{T0}, s{SWC}, 11
        s_add_u32 s{SSTR}, s{SSTR}, s{T0}
        s_add_u32 s{SSTR}, s{SSTR}, {3*4096}
        s_mov_b32 s{T4}, {fbits(GELU_B)}
        s_mov_b32 s{T5}, {fbits(GELU_B)}
        v_mov_b32 v138, {fbits(GELU_A)}
        v_mov_b32 v139, {fbits(GELU_A)}
        s_mov_b32 s{T2}, {fbits(LOG2E)}
        s_mov_b32 s{T3}, {fbits(1e30)}
        s_waitcnt lgkmcnt(0)""")
        for r in (132, 133, 134, 135, 137):
            a(f"v_mul_f32 v{r}, s{T2}, v{r}")
        for r in (132, 133, 134, 135, 137):
            a(f"v_exp_f32 v{r}, v{r}")
        a("s_nop 0")
        for r in (132, 133, 134, 135, 137):
            a(f"v_add_f32 v{r}, 1.0, v{r}")
        for r in (132, 133, 134, 135):
            a(f"v_min_f32 v{r}, s{T3}, v{r}")
        a(f"""v_rcp_f32 v137, v137
        s_lshl_b32 s{T0}, s{RT}, 3
        s_add_u32 s{T0}, s{T0}, s{CT}
        s_lshl_b32 s{T0}, s{T0}, 9
        s_lshl_b32 s{T1}, s{SWR}, 8
        s_add_u32 s{T0}, s{T0}, s{T1}
        s_add_u32 s{T0}, s{T0}, {AUX_OFF}
        v_lshlrev_b32 v136, 2, v{LANE}
        s_cmp_lg_u32 s{SWC}, 0
        s_cbranch_scc1 L_NOAUX
        buffer_store_dword v137, v136, {R(SWS)}, s{T0} offen sc1""")
        a.label("L_NOAUX")
        units = []
        for p in range(3):
            for b in range(4):
                units.append(([(16 * (2 * p) + 4 * b, b), (16 * (2 * p + 1) + 4 * b, b)], SSTR5, 1024 * b, p))
        for q in range(2):
            units.append(([(96 + 8 * q, 2 * q), (96 + 8 * q + 4, 2 * q + 1)], SSTR, 1024 * q, None))
        for u, (blks, sreg, off, p) in enumerate(units):
            t = 112 + 8 * (u & 1)
            pr = [(x + 2 * h, t + 4 * i + 2 * h, b) for i, (x, b) in enumerate(blks) for h in range(2)]
            for x, y, b in pr:
                a(f"v_pk_mul_f32 v[{y}:{y+1}], v[{x}:{x+1}], v[{x}:{x+1}]")
            for x, y, b in pr:
                a(f"v_pk_fma_f32 v[{y}:{y+1}], v[{y}:{y+1}], s[{T4}:{T5}], v[138:139]")
            for x, y, b in pr:
                a(f"v_pk_mul_f32 v[{y}:{y+1}], v[{y}:{y+1}], v[{x}:{x+1}]")
            for i in range(8):
                a(f"v_exp_f32 v{t+i}, v{t+i}")
            for x, y, b in pr:
                c = 132 + (b & ~1)
                s = b & 1
                a(f"v_pk_fma_f32 v[{y}:{y+1}], v[{y}:{y+1}], v[{c}:{c+1}], v[{c}:{c+1}] op_sel:[0,{s},{s}] op_sel_hi:[1,{s},{s}]")
            for i in range(8):
                a(f"v_rcp_f32 v{t+i}, v{t+i}")
            for x, y, b in pr:
                a(f"v_pk_mul_f32 v[{y}:{y+1}], v[{y}:{y+1}], v[{x}:{x+1}]")
            d = 140 if (u & 1) else 128
            for i in range(4):
                a(f"v_cvt_pk_bf16_f32 v{d+i}, v{t+2*i}, v{t+2*i+1}")
            a(f"buffer_store_dwordx4 v[{d}:{d+3}], v145, {R(SWS)}, s{sreg} offen offset:{off} sc1")
            if p is not None and off == 3072 and p < 2:
                a(f"s_add_u32 s{SSTR5}, s{SSTR5}, 4096")
        a("s_branch L_CDONE")

    def att(self):
        a = self.a
        a.label("L_C_ATT")
        a(f"""v_lshrrev_b32 v155, 1, v151
        v_mul_u32_u24 v155, 6144, v155
        v_and_b32 v156, 1, v151
        v_lshl_add_u32 v155, v156, 10, v155
        v_lshl_add_u32 v155, v152, 7, v155
        v_lshl_add_u32 v155, v153, 3, v155
        v_add_u32 v155, {BUF[0] + 18432}, v155
        v_lshrrev_b32 v157, 1, v152
        v_lshl_or_b32 v157, v156, 1, v157
        s_lshl_b32 s{T0}, s{SWC}, 1
        v_xor_b32 v157, s{T0}, v157
        v_lshl_add_u32 v130, v157, 5, v155
        v_xor_b32 v131, 32, v130
        v_add_u32 v155, 128, v150
        v_lshrrev_b32 v156, 3, v150
        v_lshl_add_u32 v156, v156, 3, v150
        v_add_u32 v156, 40, v156
        s_cmp_eq_u32 s{SWR}, 1
        s_cselect_b64 vcc, -1, 0
        v_cndmask_b32 v155, v155, v156, vcc
        v_bfe_u32 v156, v155, 1, 3
        v_bfe_u32 v157, v155, 4, 1
        v_lshlrev_b32 v157, 2, v157
        v_xor_b32 v156, v156, v157
        v_xor_b32 v156, v156, v151
        v_lshlrev_b32 v155, 7, v155
        v_lshl_add_u32 v155, v156, 4, v155
        v_add_u32 v132, {BUF[0]}, v155
        v_xor_b32 v133, 64, v132
        v_mov_b32 v155, {fbits(-1e30)}
        v_lshlrev_b32 v156, 2, v151
        v_sub_u32 v156, v150, v156
        s_or_b32 s{T0}, s{RT}, s{SWR}
        s_cmp_lg_u32 s{T0}, 0
        s_cselect_b64 s[{T2}:{T3}], -1, 0""")
        for r in range(4):
            a(f"""v_subrev_u32 v157, {r}, v156
            v_cmp_gt_u32 vcc, 8, v157
            s_nop 1
            v_cndmask_b32 v{112+r}, v155, 0, vcc
            v_cmp_ge_i32 vcc, -9, v157
            s_nop 1
            v_cndmask_b32 v{116+r}, v155, 0, vcc
            s_and_b64 vcc, vcc, s[{T2}:{T3}]
            v_cndmask_b32 v{120+r}, v155, 0, vcc
            v_cmp_ge_i32 vcc, -1, v157
            s_and_b64 vcc, vcc, s[{T2}:{T3}]
            s_mov_b32 vcc_hi, 0
            v_cndmask_b32 v{124+r}, v155, 0, vcc""")
        for i in range(112):
            a(f"v_mov_b32 v{i}, 0")
        Q = lambda hh, b: 16 * hh + 4 * b
        K = lambda hh, b: 32 + 20 * hh + 4 * b
        vpos = {3: 0, 1: 1, 4: 2, 0: 3, 2: 4}
        V = lambda hh, b: 72 + 20 * hh + 4 * vpos[b]

        def reads(ks, fb):
            out = []
            for b in range(4):
                out.append(f"ds_read_b128 a[{fb+4*b}:{fb+4*b+3}], v{128 + (ks ^ (b & 1))} offset:{2048*b}")
            out.append(f"ds_read_b128 a[{fb+16}:{fb+19}], v{132 + ks}")
            for seg in range(3):
                for hh in range(2):
                    for h in range(2):
                        d = fb + 20 + 8 * seg + 4 * hh + 2 * h
                        out.append(f"ds_read_b64_tr_b16 a[{d}:{d+1}], v{130+hh} offset:{12288*ks + 2048*seg + 512*h}")
            return out

        def mfmas(fb):
            out = []
            for seg, fn, nb in ((0, Q, 4), (1, K, 5), (2, V, 5)):
                for hh in range(2):
                    w = fb + 20 + 8 * seg + 4 * hh
                    for b in range(nb):
                        d, x = fn(hh, b), fb + 4 * b
                        p, q = (w, x) if seg < 2 else (x, w)
                        out.append(f"v_mfma_f32_16x16x32_bf16 v[{d}:{d+3}], a[{p}:{p+3}], a[{q}:{q+3}], v[{d}:{d+3}]")
            return out

        self.main_loop("L_ALOOP", reads, mfmas, [128, 129, 130, 131, 132, 133])
        self.z_reads()
        a(f"""s_lshl_b32 s{T0}, s{CT}, 1
        s_add_u32 s{T0}, s{T0}, s{SWC}
        s_add_u32 s{T0}, s{T0}, 56
        s_lshl_b32 s{T0}, s{T0}, 12
        s_add_u32 s{SSTR}, s{SSTR}, s{T0}
        s_mov_b32 s{T2}, {fbits(-LOG2E)}
        s_mov_b32 s{T4}, {fbits(0.25*LOG2E)}
        s_mov_b32 s{T5}, {fbits(0.25*LOG2E)}""")
        for base, n in ((0, 16), (32, 10), (52, 10), (72, 10), (92, 10)):
            for i in range(n):
                a(f"v_cvt_pk_bf16_f32 v{base+i}, v{base+2*i}, v{base+2*i+1}")
        a("s_waitcnt lgkmcnt(0)")
        for r in range(132, 136):
            a(f"v_mul_f32 v{r}, s{T2}, v{r}")
        for r in range(132, 136):
            a(f"v_exp_f32 v{r}, v{r}")
        for i in range(4):
            a(f"v_mov_b32 v{128+i}, 0x3f803f80")
        for r in range(132, 136):
            a(f"v_add_f32 v{r}, 1.0, v{r}")
        Qp = lambda hh, b: 8 * hh + 2 * b
        Kp = lambda hh, b: 32 + 20 * hh + 2 * b
        Vp = lambda hh, b: 72 + 20 * hh + 2 * vpos[b]
        prev = {0: 4, 1: 4, 2: 0, 3: 1}
        pmask = {0: 124, 1: 120, 2: 116, 3: 116}
        S = [16, 24, 42, 62]
        MX = [50, 70, 82, 102]
        OO = [84, 88, 104, 108]
        SUM = [136, 140, 146, 150]
        for hh in range(2):
            for b in range(4):
                cur, prv = (S[b] + 4, S[b]) if b in (0, 2) else (S[b], S[b] + 4)
                q = Qp(hh, b)
                k = Kp(hh, b)
                a(f"v_mfma_f32_16x16x16_bf16 v[{cur}:{cur+3}], v[{k}:{k+1}], v[{q}:{q+1}], v[112:115]")
                k = Kp(hh, prev[b])
                a(f"v_mfma_f32_16x16x16_bf16 v[{prv}:{prv+3}], v[{k}:{k+1}], v[{q}:{q+1}], v[{pmask[b]}:{pmask[b]+3}]")
            a("s_nop 7")
            for b in range(4):
                s, m = S[b], MX[b]
                a(f"v_max3_f32 v{m}, v{s}, v{s+1}, v{s+2}\nv_max3_f32 v{m+1}, v{s+3}, v{s+4}, v{s+5}")
            for b in range(4):
                s, m = S[b], MX[b]
                a(f"v_max3_f32 v{m}, v{m}, v{s+6}, v{s+7}")
            for b in range(4):
                m = MX[b]
                a(f"v_max_f32 v{m}, v{m}, v{m+1}")
            for sw in ("v_permlane16_swap_b32", "v_permlane32_swap_b32"):
                for b in range(4):
                    a(f"v_mov_b32 v{MX[b]+1}, v{MX[b]}")
                a("s_nop 1")
                for b in range(4):
                    a(f"{sw} v{MX[b]+1}, v{MX[b]}")
                a("s_nop 1")
                for b in range(4):
                    a(f"v_max_f32 v{MX[b]}, v{MX[b]}, v{MX[b]+1}")
            for b in range(4):
                a(f"v_mul_f32 v{MX[b]}, s{T4}, v{MX[b]}")
            for b in range(4):
                s, m = S[b], MX[b]
                for i in range(4):
                    a(f"v_pk_fma_f32 v[{s+2*i}:{s+2*i+1}], v[{s+2*i}:{s+2*i+1}], s[{T4}:{T5}], v[{m}:{m+1}] "
                      f"op_sel_hi:[1,1,0] neg_lo:[0,0,1] neg_hi:[0,0,1]")
            for b in range(4):
                for i in range(8):
                    a(f"v_exp_f32 v{S[b]+i}, v{S[b]+i}")
            a("s_nop 0")
            for b in range(4):
                for i in range(4):
                    a(f"v_cvt_pk_bf16_f32 v{S[b]+i}, v{S[b]+2*i}, v{S[b]+2*i+1}")
            a("s_nop 1")
            for b in range(4):
                s = S[b]
                v = min(Vp(hh, b), Vp(hh, prev[b]))
                a(f"v_mfma_f32_16x16x32_bf16 v[{SUM[b]}:{SUM[b]+3}], v[128:131], v[{s}:{s+3}], 0")
                a(f"v_mfma_f32_16x16x32_bf16 v[{OO[b]}:{OO[b]+3}], v[{v}:{v+3}], v[{s}:{s+3}], 0")
            a("s_nop 7")
            for b in range(4):
                a(f"v_mul_f32 v{SUM[b]}, v{SUM[b]}, v{132+b}")
            for b in range(4):
                a(f"v_rcp_f32 v{SUM[b]}, v{SUM[b]}")
            a("s_nop 0")
            for b in range(4):
                for i in range(2):
                    x = OO[b] + 2 * i
                    a(f"v_pk_mul_f32 v[{x}:{x+1}], v[{x}:{x+1}], v[{SUM[b]}:{SUM[b]+1}] op_sel_hi:[1,0]")
            if hh == 0:
                for b in range(4):
                    for i in range(2):
                        a(f"v_cvt_pk_bf16_f32 v{2*b+i}, v{OO[b]+2*i}, v{OO[b]+2*i+1}")
            else:
                for b in range(4):
                    s = S[b]
                    a(f"v_mov_b32 v{s}, v{2*b}\nv_mov_b32 v{s+1}, v{2*b+1}")
                    for i in range(2):
                        a(f"v_cvt_pk_bf16_f32 v{s+2+i}, v{OO[b]+2*i}, v{OO[b]+2*i+1}")
                    a(f"buffer_store_dwordx4 v[{s}:{s+3}], v145, {R(SWS)}, s{SSTR} offen offset:{1024*b} sc1")

    def lds_wait(self, off):
        a = self.a
        l1, l2 = self.lab("L_LW"), self.lab("L_LWX")
        a(f"s_lshl_b32 s{T0}, s{LW}, 2\nv_mov_b32 v150, s{T0}\ns_mov_b32 s{T1}, {POLL_MAX}")
        a.label(l1)
        a(f"""ds_read_b32 v151, v150 offset:{off}
        s_sub_u32 s{T1}, s{T1}, 1
        s_cbranch_scc1 {l2}
        s_waitcnt lgkmcnt(0)
        v_cmp_eq_u32 vcc, 1, v151
        s_cbranch_vccz {l1}""")
        a.label(l2)

    def compute_tail(self):
        a = self.a
        a.label("L_CDONE")
        self.stamp(3)
        self.publish()
        self.tr_addr_setup()
        self.lds_wait(LANDED_OFF)
        for j in range(9):
            self.drain(j)
        a(f"v_mov_b32 v151, 1\ns_waitcnt lgkmcnt(0)\nds_write_b32 v150, v151 offset:{DRAINED_OFF}")

    def poll(self, load, first_loaded=False):
        a = self.a
        l1, l2, l3 = self.lab("L_PL"), self.lab("L_PLX"), self.lab("L_PLC")
        a(f"s_mov_b32 s{T1}, {POLL_MAX}")
        if first_loaded:
            a(f"s_branch {l3}")
        a.label(l1)
        a(load)
        a(f"s_sub_u32 s{T1}, s{T1}, 1\ns_cbranch_scc1 {l2}")
        a.label(l3)
        a(f"""s_waitcnt vmcnt(0)
        v_cmp_ne_u32 vcc, 1, v157
        s_cbranch_vccnz {l1}""")
        a.label(l2)

    def phase2(self):
        a = self.a
        a.label("L_P2")
        self.stamp(4)
        self.poll(f"buffer_load_ubyte v157, v159, {R(SDBG)}, s{SK0} offen sc1", True)
        srd(a, SM, 18, 1024)
        a(f"""s_lshr_b32 s{T0}, s{M}, 1
        s_lshl_b32 s{T0}, s{T0}, 4
        s_add_u32 s{T0}, s{T0}, s{WAVE}
        s_lshl_b32 s{T0}, s{T0}, 8
        s_and_b32 s{T2}, s{M}, 1
        s_lshl_b32 s{T2}, s{T2}, 7
        s_add_u32 s{T0}, s{T0}, s{T2}
        s_add_u32 s{SK0}, s{T0}, {FLAG_OFF}
        s_add_u32 s{SK1}, s{SK0}, 2048
        v_lshlrev_b32 v159, 2, v158
        v_lshlrev_b32 v149, 4, v{LANE}
        v_and_b32 v150, 7, v{LANE}
        v_lshlrev_b32 v150, 4, v150
        s_lshl_b32 s{T2}, s{N}, 7
        buffer_load_dwordx4 v[152:155], v150, {R(SM)}, s{T2} offen
        s_mul_i32 s{SSTR}, s{M}, {72*4096}
        s_lshl_b32 s{T2}, s{WAVE}, 13
        s_add_u32 s{SSTR5}, s{SSTR}, s{T2}
        s_add_u32 s{SSTR5}, s{SSTR5}, {56*4096}
        s_mul_i32 s{T2}, s{WAVE}, {7*4096}
        s_add_u32 s{SSTR}, s{SSTR}, s{T2}""")
        self.poll(f"buffer_load_dword v157, v159, {R(SWS)}, s{SK1} offen sc1")
        self.stamp(5)
        dest = {0: ("v", 64), 1: ("v", 80), 2: ("v", 64), 3: ("v", 80), 4: ("v", 96), 5: ("v", 112),
                6: ("v", 64), 7: ("v", 128), 8: ("v", 80)}

        def loads(k):
            t, b = dest[k]
            s = SSTR5 if k < 2 else SSTR
            order = [0, 2, 1, 3] if k == 5 else [0, 1, 2, 3]
            for rb in range(4):
                a(f"buffer_load_dwordx4 {vr(b+4*rb, 4, t)}, v149, {R(SWS)}, s{s} offen offset:{1024*order[rb]} sc1")
            a(f"s_add_u32 s{s}, s{s}, 4096")

        def mm(k):
            t, b = dest[k]
            wt, wb = self.wreg(k)
            if k == 5:
                for q in range(2):
                    a(f"v_swap_b32 v{b+8*q+2}, v{b+8*q+4}\nv_swap_b32 v{b+8*q+3}, v{b+8*q+5}")
                a("s_nop 1")
            for rb in range(4):
                for f in range(4):
                    d = 16 * rb + 4 * f
                    c = "0" if k == 0 else f"v[{d}:{d+3}]"
                    a(f"v_mfma_f32_16x16x32_bf16 v[{d}:{d+3}], {vr(wb+4*f, 4, wt)}, {vr(b+4*rb, 4, t)}, {c}")

        loads(0); loads(1)
        a("s_waitcnt vmcnt(4) lgkmcnt(0)")
        mm(0)
        a("s_waitcnt vmcnt(0)")
        mm(1)
        self.poll(f"buffer_load_dword v157, v159, {R(SWS)}, s{SK0} offen sc1")
        self.stamp(6)
        loads(2); loads(3); loads(4); loads(5)
        a(f"""s_lshr_b32 s{T0}, s{M}, 1
        s_lshl_b32 s{T0}, s{T0}, 3
        s_add_u32 s{T0}, s{T0}, s{WAVE}
        s_lshl_b32 s{T0}, s{T0}, 9
        s_and_b32 s{T2}, s{M}, 1
        s_lshl_b32 s{T2}, s{T2}, 8
        s_add_u32 s{T0}, s{T0}, s{T2}
        s_lshl_b32 s{T2}, s{WAVE}, 5
        s_add_u32 s{T0}, s{T0}, s{T2}
        s_add_u32 s{T0}, s{T0}, {AUX_OFF}
        v_lshrrev_b32 v151, 3, v{LANE}
        v_lshlrev_b32 v156, 2, v151
        buffer_load_dword v156, v156, {R(SWS)}, s{T0} offen sc1
        s_waitcnt vmcnt(13)""")
        mm(2)
        loads(6); loads(7)
        a("s_waitcnt vmcnt(17)")
        mm(3)
        loads(8)
        a(f"""v_and_b32 v150, 15, v{LANE}
        v_lshrrev_b32 v151, 4, v{LANE}
        v_and_b32 v157, 2, v151
        v_xor_b32 v150, v150, v157
        v_lshlrev_b32 v150, 4, v150
        v_lshl_add_u32 v150, v151, 8, v150
        s_lshl_b32 s{T0}, s{LW}, 12
        s_add_u32 s{T0}, s{T0}, 4096
        s_cmp_lt_u32 s{WAVE}, 4
        s_cselect_b32 s{T2}, 0x10000, 0
        s_add_u32 s{T0}, s{T0}, s{T2}
        v_add_u32 v145, s{T0}, v150""")
        for f in range(1, 4):
            a(f"v_xor_b32 v{145+f}, {64*f}, v145\nv_add_u32 v{145+f}, {1024*f}, v{145+f}")
        a("s_waitcnt vmcnt(17)")
        mm(4)
        a("s_waitcnt vmcnt(13)")
        mm(5)
        self.lds_wait(DRAINED_OFF)
        a("s_waitcnt vmcnt(8)")
        mm(6)
        a("s_waitcnt vmcnt(4)")
        mm(7)
        a("s_waitcnt vmcnt(0)")
        mm(8)
        self.stamp(7)
        a(f"""v_lshrrev_b32 v150, 3, v{LANE}
        s_and_b32 s{T0}, s{WAVE}, 1
        s_lshl_b32 s{T0}, s{T0}, 3
        v_add_u32 v150, s{T0}, v150
        v_and_b32 v151, 7, v{LANE}
        v_lshlrev_b32 v157, 1, v151
        v_xor_b32 v157, v157, v150
        v_lshlrev_b32 v157, 4, v157
        v_lshl_add_u32 v157, v151, 9, v157
        s_lshr_b32 s{T1}, s{WAVE}, 1
        s_lshl_b32 s{T2}, s{T1}, 14
        s_add_u32 s{T2}, s{T2}, 4096
        v_add_u32 v157, s{T2}, v157
        v_add_u32 v158, 0x10000, v157""")
        for rb in range(4):
            for f in range(4):
                d = 16 * rb + 4 * f
                a(f"ds_write_b128 v{145+f}, v[{d}:{d+3}] offset:{16384*rb}")
        a(f"""s_lshr_b32 s{T2}, s{T1}, 1
        s_lshl_b32 s{T2}, s{T2}, 5
        s_and_b32 s{T1}, s{T1}, 1
        s_add_u32 s{T2}, s{T2}, s{T1}
        s_lshl_b32 s{T1}, s{M}, 6
        s_add_u32 s{T2}, s{T2}, s{T1}
        v_lshl_add_u32 v150, v150, 1, s{T2}
        v_lshlrev_b32 v150, 10, v150
        v_lshl_add_u32 v150, v151, 4, v150
        s_lshl_b32 s{T2}, s{N}, 7""")
        for i in range(4):
            a(f"v_lshlrev_b32 v{64+2*i}, 16, v{152+i}\nv_and_b32 v{65+2*i}, 0xffff0000, v{152+i}")
        for i in range(8):
            a(f"v_mul_f32 v{64+i}, v156, v{64+i}")
        a("s_waitcnt lgkmcnt(0)\ns_barrier")
        for pw in range(8):
            for gg in range(2):
                d = 8 * pw + 4 * gg
                a(f"ds_read_b128 v[{d}:{d+3}], v{157 + (pw >> 2)} offset:{4096*(pw & 3) + 256*gg}")
        for pw in range(8):
            a(f"s_waitcnt lgkmcnt({14 - 2*pw})")
            for i in range(4):
                a(f"v_pk_add_f32 v[{64+2*i}:{65+2*i}], v[{64+2*i}:{65+2*i}], v[{8*pw+2*i}:{8*pw+2*i+1}]")
        for i in range(4):
            a(f"v_cvt_pk_bf16_f32 v{72+i}, v{64+2*i}, v{65+2*i}")
        a(f"buffer_store_dwordx4 v[72:75], v150, {R(SOUT)}, s{T2} offen")
        if self.o["prof"]:
            a(f"s_waitcnt vmcnt(0)\ns_memtime s[4:5]\ns_getreg_b32 s6, hwreg(HW_REG_HW_ID)\ns_waitcnt lgkmcnt(0)")
            a(f"s_lshl_b32 s{T0}, s2, 3\ns_add_u32 s{T0}, s{T0}, s{WAVE}\ns_lshl_b32 s{T0}, s{T0}, 6\ns_add_u32 s{T0}, s{T0}, {STAMP_OFF}")
            a("s_mov_b64 exec, 1\nv_mov_b32 v1, 0")
            for i in range(10):
                src = f"s{STAMP0+2*i}" if i < 8 else ("s4" if i == 8 else "s6")
                a(f"v_mov_b32 v2, {src}\nbuffer_store_dword v2, v1, {R(SWS)}, s{T0} offen offset:{4*i}")
        if self.o["spin"] >= 0:
            a(f"s_lshr_b32 s{T0}, s{WAVE}, 2\ns_cmp_lg_u32 s{T0}, {self.o['spinw']}\ns_cbranch_scc1 L_END")
            a.label("L_SPIN")
            a("s_sleep 2\ns_memrealtime s[96:97]\ns_waitcnt lgkmcnt(0)\ns_sub_u32 s96, s96, s98\ns_cmp_lt_u32 s96, 4000\ns_cbranch_scc1 L_SPIN")
        a.label("L_END")
        a("s_endpgm")

    def build(self):
        self.prologue()
        self.loader()
        self.compute_common_setup()
        self.ffn()
        self.att()
        self.compute_tail()
        self.phase2()
        ref = open(f"cdna_kernels/{KNAME}.s.ref").read().split("\n")
        head = [l for l in ref if l.startswith(";") and "@launch" not in l]
        name = KNAME + "_kernel"
        return ("\n".join(head) + "\n; @launch grid=(256,1,1) block=(512,1,1) lds=163840\n" + HEAD + kernel_open(name)
                + self.a.text() + '.section .rodata,"a"\n.p2align 6\n' + kernel_desc(name, 256, 160))

if __name__ == "__main__":
    out = sys.argv[1]
    kw = {}
    for s in sys.argv[2:]:
        k, v = s.split("=")
        kw[k] = int(v)
    open(out, "w").write(Gen(**kw).build())
```

```python
import sys, struct, math
from asmlib import *

def fbits(x):
    return "0x%08x" % struct.unpack("<I", struct.pack("<f", x))[0]

A2_BYTES = 32 * 72 * 4096
AUX_OFF = A2_BYTES
FLAG_OFF = AUX_OFF + 65536
WS_END = FLAG_OFF + 65536
STAMP_OFF = 0xA00000
BUF = [73728, 118784, 28672]
Z_OFF, LANDED_OFF, DRAINED_OFF = 1024, 1536, 1568
ZOWN_OFF, E_OFF, PROG_OFF = 0, 64, 1552
EPOCH_OFF = AUX_OFF + 49152
LOG2E = 1.4426950408889634
GELU_A = -2.0 * LOG2E * math.sqrt(2.0 / math.pi)
GELU_B = GELU_A * 0.044715
POLL_MAX = 1 << 18

SX, SW, SW2, SWO, SWS, SOUT, SDBG, SM = 28, 32, 36, 40, 44, 48, 52, 56
WAVE, RT, CT, TYPE, STG, M, N, LW = 60, 61, 62, 63, 64, 65, 66, 67
T0, T1, T2, T3, T4, T5 = 68, 69, 70, 71, 72, 73
SBUF, SCNT, SW0, SD5, SSTR, SSTR5, SEX = 74, 75, 76, 77, 78, 79, 80
SK0, SK1, SWR, SWC = 82, 83, 84, 85
STAMP0 = 86
SB1, PW, SE, SROT = 3, 10, 11, 75
LANE = 144

def srd(a, d, ptr, size):
    a(f"s_mov_b32 s{d}, s{ptr}\ns_mov_b32 s{d+1}, s{ptr+1}\ns_mov_b32 s{d+2}, {size}\ns_mov_b32 s{d+3}, 0x00020000")

def R(d, n=4):
    return f"s[{d}:{d+n-1}]"

def vr(b, n=1, t="v"):
    return f"{t}{b}" if n == 1 else f"{t}[{b}:{b+n-1}]"

class Gen:
    def __init__(self, **kw):
        self.o = dict(prof=False, o5=1, o6=3, o7=3, rot=True, cprio=1, lprio=0, spin=-1, spinw=1, abl=0, rot2=1, zs=2, zl=4, st5=0, st6=0, cpl=0, cpe=1, cp2=0)
        self.o.update(kw)
        self.a = Asm()
        self.uid = 0
        self.late = []

    def lab(self, p):
        self.uid += 1
        return f"{p}_{self.uid}"

    def stamp(self, i):
        if self.o["spin"] == i:
            self.a("s_memrealtime s[98:99]\ns_waitcnt lgkmcnt(0)")
        if self.o["prof"] == 2 and i == 0:
            self.a("s_mov_b32 s98, 0\ns_mov_b32 s100, 0")
        if self.o["prof"] == 1 or (self.o["prof"] == 2 and i < 4):
            self.a(f"s_memtime s[{STAMP0+2*i}:{STAMP0+2*i+1}]\ns_waitcnt lgkmcnt(0)")

    def timed(self, text, acc):
        if self.o["prof"] == 2:
            self.a(f"s_memtime s[94:95]\n{text}\ns_memtime s[96:97]\ns_waitcnt lgkmcnt(0)\n"
                   f"s_sub_u32 s96, s96, s94\ns_add_u32 s{acc}, s{acc}, s96")
        else:
            self.a(text)

    def wreg(self, k):
        return ("v", 96 + 16 * k) if k < 3 else ("a", 16 * (k - 3))

    def prologue(self):
        a = self.a
        a("s_cmp_ge_u32 s2, 0x100\ns_cbranch_scc1 L_END")
        a("s_load_dwordx16 s[4:19], s[0:1], 0\ns_load_dwordx8 s[20:27], s[0:1], 64")
        self.stamp(0)
        a(f"""v_lshrrev_b32 v1, 6, v0
        v_and_b32 v{LANE}, 63, v0
        s_and_b32 s{T0}, s2, 7
        v_readfirstlane_b32 s{WAVE}, v1
        s_lshr_b32 s{T1}, s2, 3
        s_and_b32 s{T2}, s{T1}, 7
        s_lshr_b32 s{T3}, s{T1}, 3
        s_and_b32 s{RT}, s{T0}, 1
        s_lshl_b32 s{RT}, s{RT}, 3
        s_add_u32 s{RT}, s{RT}, s{T2}
        s_and_b32 s{CT}, s{T0}, 6
        s_lshr_b32 s{T4}, s{T3}, 1
        s_add_u32 s{CT}, s{CT}, s{T4}
        s_and_b32 s{TYPE}, s{T3}, 1
        s_lshl_b32 s{STG}, s{T3}, {1 if self.o['rot'] == 1 else 0}
        s_add_u32 s{STG}, s{STG}, s{T2}
        s_lshl_b32 s{STG}, s{STG}, {max(self.o['rot'] - 1, 0)}
        s_and_b32 s{STG}, s{STG}, {7 if self.o['rot'] else 0}
        s_lshl_b32 s{M}, s{T0}, 2
        s_and_b32 s{T4}, s{T1}, 3
        s_add_u32 s{M}, s{M}, s{T4}
        s_lshr_b32 s{N}, s{T1}, 2
        s_and_b32 s{LW}, s{WAVE}, 3
        s_waitcnt lgkmcnt(0)""")
        srd(a, SX, 4, 2097152)
        a(f"s_cmp_ge_u32 s{WAVE}, 4\ns_cbranch_scc1 L_COMPUTE")

    def p2_roles(self):
        a = self.a
        if not self.o["rot2"]:
            a(f"s_mov_b32 s{PW}, s{WAVE}\ns_mov_b32 s{SB1}, 0\ns_mov_b32 s{SROT}, 0")
            return
        a(f"""s_xor_b32 s{T0}, s{M}, s{N}
        s_and_b32 s{T0}, s{T0}, 1
        s_lshl_b32 s{T0}, s{T0}, 2
        s_xor_b32 s{PW}, s{WAVE}, s{T0}
        s_bfe_u32 s{SB1}, s{M}, 0x10001
        s_mul_i32 s{T0}, s{SB1}, 3
        s_add_u32 s{SROT}, s{N}, s{T0}
        s_sub_u32 s{T0}, s{SROT}, 7
        s_cselect_b32 s{SROT}, s{SROT}, s{T0}""")

    def kstep(self, k, dst):
        a = self.a
        if k < 2:
            a(f"s_xor_b32 s{dst}, s{SB1}, {k}")
        else:
            a(f"s_add_u32 s{dst}, s{SROT}, {k - 2}\ns_sub_u32 s{T5}, s{dst}, 7\ns_cselect_b32 s{dst}, s{dst}, s{T5}")

    def late_srds(self):
        a = self.a
        self.p2_roles()
        srd(a, SWS, 26, hex(STAMP_OFF + 0x40000 if self.o["prof"] else WS_END))
        srd(a, SDBG, 24, 256)
        srd(a, SOUT, 22, 2097152)

    def issue_stage(self, bufreg, mid=None):
        a = self.a
        a(f"s_lshl_b32 s{T0}, s{STG}, 7\ns_mul_i32 s{T1}, s{STG}, s{SSTR5}\ns_mul_i32 s{T2}, s{STG}, s{SSTR}")
        a(f"s_lshl_b32 s{T3}, s{LW}, 12\ns_add_u32 m0, s{bufreg}, s{T3}")
        a(f"s_add_u32 s{STG}, s{STG}, 1")
        for i in range(4):
            a(f"buffer_load_dwordx4 v{2+i}, {R(SX)}, s{T0} offen lds")
            if i < 3:
                a("s_add_u32 m0, m0, 0x400\ns_nop 0")
        a(f"s_add_u32 m0, s{bufreg}, s{SD5}\ns_mov_b64 exec, s[{SEX}:{SEX+1}]")
        a(f"buffer_load_dwordx4 v6, {R(SM)}, s{T1} offen lds")
        a(f"s_add_u32 m0, s{bufreg}, s{SW0}\ns_mov_b64 exec, -1")
        for t in range(6):
            a(f"buffer_load_dwordx4 v{7+t}, {R(SW)}, s{T2} offen lds")
            if t < 5:
                a("s_add_u32 m0, m0, 0x400\ns_nop 0")
            if t == 2 and mid:
                mid()
        a(f"s_and_b32 s{STG}, s{STG}, 7")

    def next_buf(self):
        a = self.a
        a(f"""s_add_u32 s{SBUF}, s{SBUF}, 45056
        s_cmp_gt_u32 s{SBUF}, {BUF[1]}
        s_cselect_b32 s{SBUF}, {BUF[2]}, s{SBUF}""")

    def w2_dma(self, k, partner):
        a = self.a
        s, mul = (SWO, 2) if k < 2 else (SW2, 7)
        self.kstep(k, T2)
        a(f"s_xor_b32 s{T0}, s{PW}, {4 if partner else 0}\ns_lshl_b32 s{T1}, s{LW}, 12\ns_mul_i32 s{T0}, s{T0}, {mul}")
        a(f"s_add_u32 m0, s{T1}, {4096 + 16384 * k}\ns_add_u32 s{T0}, s{T0}, s{T2}\ns_lshl_b32 s{T0}, s{T0}, 15")
        for i in range(4):
            a(f"buffer_load_dwordx4 v{16+i}, {R(s)}, s{T0} offen lds")
            if i < 3:
                a("s_add_u32 m0, m0, 0x400\ns_nop 0")

    def tr_addr_setup(self):
        a = self.a
        a(f"""v_lshrrev_b32 v150, 2, v{LANE}
        v_and_b32 v151, 3, v{LANE}
        v_lshlrev_b32 v145, 7, v150
        v_lshl_add_u32 v145, v151, 3, v145
        v_bfe_u32 v150, v150, 1, 2
        v_lshl_add_u32 v145, v150, 5, v145
        s_lshl_b32 s{T0}, s{LW}, 12
        s_add_u32 s{T0}, s{T0}, 4096
        v_add_u32 v145, s{T0}, v145
        v_xor_b32 v146, 32, v145
        v_xor_b32 v147, 64, v145
        v_xor_b32 v148, 0x60, v145""")

    def drain(self, k):
        a = self.a
        t, b = self.wreg(k)
        if k in (4, 8):
            for f in range(4):
                a(f"v_add_u32 v{145+f}, 0x10000, v{145+f}")
        for f in range(4):
            for h in range(2):
                a(f"ds_read_b64_tr_b16 {vr(b+4*f+2*h, 2, t)}, v{145+f} offset:{16384*(k%4)+2048*h}")

    def z_check(self):
        a = self.a
        a(f"s_mov_b32 s{T1}, {POLL_MAX}\nv_cmp_ne_u32 vcc, s{SE}, v15\ns_cbranch_vccnz L_ZPOLL")
        a.label("L_ZGOT")
        a(f"ds_write_b32 v13, v14 offset:{Z_OFF}")
        self.late.append(f"""L_ZPOLL:
        buffer_load_dwordx2 v[14:15], v24, {R(SWS)}, s{SK0} offen sc1
        s_sub_u32 s{T1}, s{T1}, 1
        s_cbranch_scc1 L_ZGOT
        s_waitcnt vmcnt(0)
        v_cmp_ne_u32 vcc, s{SE}, v15
        s_cbranch_vccnz L_ZPOLL
        s_branch L_ZGOT""")

    def loader(self):
        a, o = self.a, self.o
        if o["lprio"]:
            a(f"s_setprio {o['lprio']}")
        a(f"""v_lshrrev_b32 v16, 3, v{LANE}
        v_lshrrev_b32 v17, 4, v{LANE}
        v_and_b32 v18, 7, v{LANE}
        v_xor_b32 v19, v18, v17
        s_lshl_b32 s{T0}, s{RT}, 7
        s_lshl_b32 s{T1}, s{LW}, 5
        s_add_u32 s{T1}, s{T1}, s{T0}
        v_lshl_add_u32 v2, v16, 1, s{T1}
        v_lshlrev_b32 v2, 10, v2
        v_lshl_add_u32 v2, v19, 4, v2
        v_xor_b32 v4, 64, v2
        v_add_u32 v5, 17408, v2
        v_add_u32 v3, 16384, v4
        v_add_u32 v4, 1024, v4
        s_cmp_eq_u32 s{TYPE}, 1
        s_cbranch_scc1 L_LSET_ATT""")
        srd(a, SW, 12, 1835008)
        srd(a, SM, 12, 1835008)
        a(f"""s_mov_b32 s{SSTR}, 229376
        s_mov_b32 s{SSTR5}, 229376
        s_mov_b64 s[{SEX}:{SEX+1}], -1
        s_mul_i32 s{SD5}, s{LW}, 7168
        s_add_u32 s{SD5}, s{SD5}, 16384
        s_add_u32 s{SW0}, s{SD5}, 1024
        s_mul_i32 s{T0}, s{LW}, {16*3584}
        s_mul_i32 s{T1}, s{CT}, 448
        s_add_u32 s{T0}, s{T0}, s{T1}
        s_movk_i32 s{T1}, 2341
        s_movk_i32 s{T2}, 3584""")
        for i in range(7):
            a(f"""v_add_u32 v20, {64*i}, v{LANE}
            v_mul_u32_u24 v21, s{T1}, v20
            v_lshrrev_b32 v21, 16, v21
            v_mul_u32_u24 v22, 28, v21
            v_sub_u32 v22, v20, v22
            v_lshrrev_b32 v23, 3, v21
            v_lshlrev_b32 v23, 1, v23
            v_xor_b32 v22, v22, v23
            v_mul_u32_u24 v21, s{T2}, v21
            v_lshl_add_u32 v21, v22, 4, v21
            v_add_u32 v{6+i}, s{T0}, v21""")
        a("s_branch L_LSET_DONE")
        a.label("L_LSET_ATT")
        srd(a, SW, 6, 1572864)
        srd(a, SM, 4, 2097152)
        a(f"""s_mov_b32 s{SSTR}, 196608
        s_movk_i32 s{SSTR5}, 128
        s_mov_b32 s{SEX}, -1
        s_mov_b32 s{SEX+1}, 0
        s_lshl_b32 s{SD5}, s{LW}, 9
        s_add_u32 s{SD5}, s{SD5}, 16384
        s_mul_i32 s{SW0}, s{LW}, 6144
        s_add_u32 s{SW0}, s{SW0}, 18432
        s_lshl_b32 s{T1}, s{LW}, 2
        v_add_u32 v20, s{T1}, v16
        v_and_b32 v21, 7, v20
        v_lshlrev_b32 v21, 1, v21
        v_bfe_u32 v22, v20, 3, 1
        s_sub_u32 s{T0}, s{T0}, 16
        v_add3_u32 v21, v21, v22, s{T0}
        v_max_i32 v21, 0, v21
        v_bfe_u32 v22, v20, 1, 3
        v_xor_b32 v22, v22, v18
        v_lshlrev_b32 v21, 10, v21
        v_lshl_add_u32 v6, v22, 4, v21
        s_mul_i32 s{T0}, s{LW}, {16*3072}
        s_lshl_b32 s{T1}, s{CT}, 7
        s_add_u32 s{T0}, s{T0}, s{T1}
        s_movk_i32 s{T2}, 3072
        v_mul_u32_u24 v20, s{T2}, v16
        v_and_b32 v21, 1, v17
        v_lshlrev_b32 v21, 1, v21
        v_xor_b32 v21, v21, v18
        v_lshl_add_u32 v20, v21, 4, v20
        v_add_u32 v7, s{T0}, v20
        v_xor_b32 v20, 64, v20
        v_add_u32 v20, {8*3072}, v20
        v_add_u32 v8, s{T0}, v20
        v_add_u32 v9, 1024, v7
        v_add_u32 v10, 1024, v8
        v_add_u32 v11, 2048, v7
        v_add_u32 v12, 2048, v8""")
        a.label("L_LSET_DONE")
        a(f"s_mov_b32 s{SBUF}, {BUF[0]}")
        self.issue_stage(SBUF)
        self.next_buf()
        self.issue_stage(SBUF)
        self.next_buf()
        self.stamp(1)
        a(f"""v_and_b32 v13, 31, v{LANE}
        v_lshlrev_b32 v13, 2, v13
        s_lshl_b32 s{T0}, s{LW}, 7
        v_add_u32 v13, s{T0}, v13
        v_bfe_u32 v24, v{LANE}, 3, 2
        v_lshlrev_b32 v24, 7, v24
        v_lshl_add_u32 v24, v18, 3, v24
        s_lshl_b32 s{T0}, s{RT}, 11
        s_lshl_b32 s{T1}, s{LW}, 9
        s_add_u32 s{T0}, s{T0}, {AUX_OFF}
        s_add_u32 s{SK0}, s{T0}, s{T1}
        s_lshl_b32 s{T1}, s{TYPE}, 3
        s_add_u32 s{T1}, s{T1}, s{CT}
        s_lshl_b32 s{T1}, s{T1}, 7
        s_add_u32 s{SK1}, s{T0}, s{T1}
        v_lshlrev_b32 v19, 1, v17
        v_xor_b32 v19, v19, v18
        v_lshlrev_b32 v16, 10, v16
        v_lshl_add_u32 v16, v19, 4, v16
        s_lshl_b32 s{T0}, s{N}, 7
        v_add_u32 v16, s{T0}, v16
        v_add_u32 v17, 8192, v16
        v_add_u32 v18, 16384, v16
        v_add_u32 v19, 24576, v16""")
        srd(a, SW2, 16, 1835008)
        srd(a, SWO, 8, 524288)
        self.late_srds()
        self.tr_addr_setup()
        srd(a, SOUT, 18, 1024)
        a(f"s_lshl_b32 s{T0}, s{N}, 7\nbuffer_load_dword v25, off, {R(SOUT)}, s{T0}")
        srd(a, SOUT, 22, 2097152)
        zs = o["zs"]
        for it in range(6):
            if it == 0:
                a("s_waitcnt vmcnt(12)")
            elif it == zs:
                a(f"s_cmp_eq_u32 s{LW}, 0\ns_cbranch_scc1 L_W12\ns_waitcnt vmcnt(11)")
                a.label("L_W12")
                a("s_waitcnt vmcnt(12)")
            else:
                a("s_waitcnt vmcnt(11)")
            a("s_barrier")
            if it == zs - 2:
                a(f"buffer_load_dword v14, off, {R(SDBG)}, 0 sc1")
            if it == zs - 1:
                a(f"s_mov_b32 s{T1}, {POLL_MAX}\nv_cmp_eq_u32 vcc, 0, v14\ns_cbranch_vccnz L_EPOLL")
                a.label("L_EGOT")
                a(f"v_readfirstlane_b32 s{SE}, v14\nv_lshlrev_b32 v20, 2, v{LANE}\nds_read_b32 v22, v20 offset:{ZOWN_OFF}")
                self.late.append(f"""L_EPOLL:
                buffer_load_dword v14, off, {R(SDBG)}, 0 sc1
                s_sub_u32 s{T1}, s{T1}, 1
                s_cbranch_scc1 L_EGOT
                s_waitcnt vmcnt(0)
                v_cmp_eq_u32 vcc, 0, v14
                s_cbranch_vccnz L_EPOLL
                s_branch L_EGOT""")
            if it == o["zl"]:
                a(f"buffer_load_dwordx2 v[14:15], v24, {R(SWS)}, s{SK0} offen sc1")
            if it == o["zl"] + 1:
                self.z_check()
            if not o["abl"] & 4:
                self.issue_stage(SBUF)
            self.next_buf()
            if it == zs - 1:
                a(f"""s_cmp_lg_u32 s{LW}, 0
                s_cbranch_scc1 L_NOZST
                v_mov_b32 v23, v14
                v_lshlrev_b32 v21, 3, v{LANE}
                s_mov_b64 exec, 0xff
                s_waitcnt lgkmcnt(0)
                buffer_store_dwordx2 v[22:23], v21, {R(SWS)}, s{SK1} offen sc1
                ds_write_b32 v20, v23 offset:{E_OFF}
                s_mov_b64 exec, -1""")
                a.label("L_NOZST")
        k = 0
        for _ in range(o["o5"]):
            self.w2_dma(k, False); k += 1
        a(f"v_and_b32 v20, 3, v{LANE}\nv_lshlrev_b32 v20, 2, v20")
        a(f"s_waitcnt vmcnt({4*k}) lgkmcnt(0)\ns_barrier")
        if o["abl"] & 64:
            self.stamp(1)
        for i in range(o["o6"]):
            self.w2_dma(k, False); k += 1
        self.lds_wait(PROG_OFF, 20, 21)
        for _ in range(o["o7"]):
            self.w2_dma(k, False); k += 1
        self.lds_wait(PROG_OFF + 32, 20, 21)
        self.stamp(2)
        while k < 9:
            self.w2_dma(k, False); k += 1
        for j in range(9):
            a("s_waitcnt vmcnt(32)")
            self.drain(j)
            a("s_waitcnt lgkmcnt(0)")
            self.w2_dma(j, True)
        self.p2_setup()
        a(f"""s_lshl_b32 s{T0}, s{LW}, 2
        v_mov_b32 v24, s{T0}
        v_mov_b32 v25, 1
        s_waitcnt vmcnt(0)
        ds_write_b32 v24, v25 offset:{LANDED_OFF}""")
        self.stamp(3)
        a("s_branch L_P2")

    def compute_common_setup(self):
        a, o = self.a, self.o
        a.label("L_COMPUTE")
        if o["cprio"]:
            a(f"s_setprio {o['cprio']}")
        self.late_srds()
        a(f"s_lshl_b32 s{T0}, s2, 3\ns_add_u32 s{T0}, s{T0}, s{WAVE}\ns_cmp_eq_u32 s{T0}, 5\ns_cbranch_scc1 L_EPUB")
        a.label("L_EPUBX")
        self.late.append(f"""L_EPUB:
        s_mov_b32 s{T0}, {EPOCH_OFF}
        s_mov_b64 exec, 1
        buffer_load_dword v2, off, {R(SWS)}, s{T0} sc1
        s_waitcnt vmcnt(0)
        v_add_u32 v2, 0x9e3779b9, v2
        v_max_u32 v2, 1, v2
        buffer_store_dword v2, off, {R(SDBG)}, 0 sc1
        buffer_store_dword v2, off, {R(SWS)}, s{T0} sc1
        s_mov_b64 exec, -1
        s_branch L_EPUBX""")
        a(f"""s_lshr_b32 s{SWR}, s{LW}, 1
        s_and_b32 s{SWC}, s{LW}, 1
        v_lshrrev_b32 v151, 4, v{LANE}
        s_cmp_eq_u32 s{TYPE}, 1
        s_cbranch_scc1 L_NOB1""")
        srd(a, SM, 14, 3584)
        a(f"""s_mul_i32 s{T0}, s{CT}, 448
        s_lshl_b32 s{T1}, s{SWC}, 8
        s_add_u32 s{T1}, s{T1}, s{T0}
        s_lshl_b32 s{T2}, s{SWC}, 5
        s_add_u32 s{T2}, s{T2}, s{T0}
        v_lshlrev_b32 v155, 3, v151""")
        for j in range(6):
            a(f"buffer_load_dwordx2 v[{112+2*j}:{113+2*j}], v155, {R(SM)}, s{T1} offen offset:{32*j}")
        a(f"buffer_load_dwordx2 v[124:125], v155, {R(SM)}, s{T2} offen offset:192")
        a.label("L_NOB1")
        a(f"""s_cmp_lg_u32 s{LW}, 0
        s_cbranch_scc1 L_NOZLD
        s_lshl_b32 s{T0}, s{RT}, 1
        s_add_u32 s{T0}, s{T0}, s{TYPE}
        s_lshl_b32 s{T0}, s{T0}, 1
        s_lshr_b32 s{T1}, s{CT}, 2
        s_add_u32 s{T0}, s{T0}, s{T1}
        s_lshl_b32 s{T0}, s{T0}, 1
        s_and_b32 s{T1}, s{CT}, 1
        s_add_u32 s{T0}, s{T0}, s{T1}
        s_lshl_b32 s{T0}, s{T0}, 4
        s_bfe_u32 s{T1}, s{CT}, 0x10001
        s_add_u32 s{T0}, s{T0}, s{T1}
        s_lshl_b32 s{T0}, s{T0}, 10
        v_lshlrev_b32 v1, 4, v{LANE}""")
        srd(a, SW, 20, 1024)
        for j in range(8):
            a(f"buffer_load_dwordx4 v[{16+4*j}:{19+4*j}], v1, {R(SX)}, s{T0} offen offset:{2048*(j&1)}")
            if j & 1 and j < 7:
                a(f"s_add_u32 s{T0}, s{T0}, 4096")
        a(f"buffer_load_dwordx4 v[12:15], v1, {R(SW)}, 0 offen")
        a.label("L_NOZLD")
        a(f"""s_lshl_b32 s{T0}, s{RT}, 4
        s_lshl_b32 s{T1}, s{TYPE}, 3
        s_add_u32 s{T0}, s{T0}, s{T1}
        s_add_u32 s{SD5}, s{T0}, s{CT}
        s_cmp_lg_u32 s{LW}, 0
        s_cbranch_scc1 L_NOCLR
        v_mov_b32 v2, 0
        v_lshlrev_b32 v1, 2, v{LANE}
        s_mov_b64 exec, 0xffff
        ds_write_b32 v1, v2 offset:{LANDED_OFF}
        s_mov_b64 exec, -1""")
        for j in range(8):
            a(f"v_mov_b32 v{4+j}, 0")
        a(f"v_lshrrev_b32 v1, 1, v{LANE}\ns_waitcnt vmcnt(0)")
        for i in range(4):
            for j in range(8):
                a(f"v_dot2c_f32_bf16 v{4+j}, v{16+4*j+i}, v{12+i}")
        a("s_nop 2")
        for j in range(4):
            a(f"v_permlane32_swap_b32 v{4+j}, v{8+j}")
        a("s_nop 1")
        for j in range(4):
            a(f"v_add_f32 v{4+j}, v{4+j}, v{8+j}")
        a("s_nop 1")
        for j in range(2):
            a(f"v_permlane16_swap_b32 v{4+j}, v{6+j}")
        a("s_nop 1")
        for j in range(2):
            a(f"v_add_f32 v{4+j}, v{4+j}, v{6+j}")
        a("""s_nop 1
        v_add_f32_dpp v6, v4, v4 row_ror:8 row_mask:0xf bank_mask:0x3
        v_add_f32_dpp v6, v5, v5 row_ror:8 row_mask:0xf bank_mask:0xc""")
        for mode in ("quad_perm:[1,0,3,2]", "quad_perm:[2,3,0,1]", "row_half_mirror"):
            a(f"s_nop 1\nv_add_f32_dpp v6, v6, v6 {mode} row_mask:0xf bank_mask:0xf")
        a(f"""s_mov_b32 s{T2}, 0x01010101
        s_mov_b32 s{T3}, 0x01010101
        s_mov_b64 exec, s[{T2}:{T3}]
        ds_write_b32 v1, v6 offset:{ZOWN_OFF}
        s_mov_b64 exec, -1""")
        a.label("L_NOCLR")
        a(f"""v_and_b32 v150, 15, v{LANE}
        v_bfe_u32 v152, v{LANE}, 2, 2
        v_and_b32 v153, 3, v{LANE}
        v_lshrrev_b32 v154, 1, v150
        v_xor_b32 v154, v154, v151
        s_lshl_b32 s{T0}, s{SWR}, 13
        s_add_u32 s{T0}, s{T0}, {BUF[0]}
        v_lshl_add_u32 v128, v150, 7, s{T0}
        v_lshl_add_u32 v128, v154, 4, v128
        v_xor_b32 v129, 64, v128
        s_lshl_b32 s{T0}, s{LW}, 2
        v_mov_b32 v134, s{T0}
        v_mov_b32 v135, 1
        s_mov_b32 s{SBUF}, {BUF[0]}
        s_cmp_eq_u32 s{TYPE}, 1
        s_cbranch_scc1 L_C_ATT""")

    def main_loop(self, name, reads, mfmas, addr_regs):
        a = self.a
        a(f"s_waitcnt lgkmcnt(0)\ns_setprio {self.o['cpl']}\ns_barrier")
        self.stamp(1)
        for r in reads(0, 0):
            a(r)
        a(f"s_mov_b32 s{SK1}, 8")
        a.label(name)
        self.timed("s_waitcnt lgkmcnt(0)", 98)
        rd = reads(1, 44) if not self.o["abl"] & 2 else []
        for i, m in enumerate(mfmas(0)):
            a(m)
            if i < len(rd):
                a(rd[i])
            if i == 20:
                a(f"""s_add_u32 s{T4}, s{SBUF}, 45056
                s_cmp_gt_u32 s{T4}, {BUF[1]}
                s_cselect_b32 s{T4}, {BUF[2]}, s{T4}
                s_sub_u32 s{T5}, s{T4}, s{SBUF}
                s_mov_b32 s{SBUF}, s{T4}
                s_sub_u32 s{SK1}, s{SK1}, 1""")
            if 21 <= i < 21 + len(addr_regs):
                r = addr_regs[i - 21]
                a(f"v_add_u32 v{r}, s{T5}, v{r}")
        self.timed("s_waitcnt lgkmcnt(0)", 98)
        a(f"s_cmp_le_u32 s{SK1}, 1\ns_cbranch_scc1 {name}_SIG\ns_barrier")
        a.label(name + "_BACK")
        self.late.append(f"{name}_SIG:\nds_write_b32 v134, v135 offset:{PROG_OFF}\nv_add_u32 v134, 32, v134\ns_branch {name}_BACK")
        rd = reads(0, 0) if not self.o["abl"] & 2 else []
        for i, m in enumerate(mfmas(44)):
            a(m)
            if i < len(rd):
                a(rd[i])
        a(f"s_cmp_lg_u32 s{SK1}, 0\ns_cbranch_scc1 {name}\ns_setprio {self.o['cpe']}")
        self.stamp(2)

    def z_reads(self):
        a = self.a
        a(f"""s_lshl_b32 s{T0}, s{SWR}, 8
        v_lshl_add_u32 v136, v150, 2, s{T0}
        s_waitcnt lgkmcnt(0)""")
        for b in range(4):
            a(f"ds_read_b32 v{132+b}, v136 offset:{Z_OFF + 64*b}")
        a(f"v_mov_b32 v159, 0\nds_read_b32 v158, v159 offset:{E_OFF}")
        a(f"""s_lshl_b32 s{T0}, s{RT}, 1
        s_add_u32 s{T0}, s{T0}, s{SWR}
        s_mul_i32 s{SSTR}, s{T0}, {72*4096}
        v_lshlrev_b32 v145, 4, v{LANE}""")

    def publish(self):
        a = self.a
        a(f"""s_lshl_b32 s{T0}, s{SD5}, 8
        s_lshl_b32 s{T1}, s{SWR}, 7
        s_lshl_b32 s{T2}, s{SWC}, 2
        s_add_u32 s{T0}, s{T0}, s{T1}
        s_add_u32 s{T2}, s{T2}, {FLAG_OFF}
        s_add_u32 s{SW0}, s{T0}, s{T2}
        v_readfirstlane_b32 s{SE}, v158""")

    def publish_store(self):
        return f"""s_waitcnt vmcnt(1)
        s_mov_b64 exec, 1
        buffer_store_dword v158, off, {R(SWS)}, s{SW0} sc1
        s_mov_b64 exec, -1"""

    def ffn(self):
        a = self.a
        a(f"""s_movk_i32 s{T0}, 448
        v_lshl_add_u32 v155, v151, 3, v152
        v_mul_u32_u24 v155, s{T0}, v155
        v_lshl_add_u32 v155, v153, 3, v155
        v_add_u32 v155, {BUF[0] + 16384}, v155
        v_and_b32 v156, 1, v151
        s_lshl_b32 s{T1}, s{SWC}, 8
        v_lshl_add_u32 v130, v156, 5, v155
        v_add_u32 v130, s{T1}, v130
        v_xor_b32 v157, 1, v156
        v_lshl_add_u32 v131, v157, 5, v155
        v_add_u32 v131, s{T1}, v131
        v_xor_b32 v157, s{SWC}, v156
        v_lshl_add_u32 v132, v157, 5, v155
        s_cmp_eq_u32 s{LW}, 0
        s_cbranch_scc1 L_B1OK
        s_waitcnt vmcnt(0)""")
        a.label("L_B1OK")
        for j in range(7):
            for b in range(4):
                d = 16 * j + 4 * b
                a(f"""v_lshlrev_b32 v{d}, 16, v{112+2*j}
                v_and_b32 v{d+1}, 0xffff0000, v{112+2*j}
                v_lshlrev_b32 v{d+2}, 16, v{113+2*j}
                v_and_b32 v{d+3}, 0xffff0000, v{113+2*j}""")

        def reads(ks, fb):
            out = []
            for b in range(4):
                out.append(f"ds_read_b128 a[{fb+4*b}:{fb+4*b+3}], v{128 + (ks ^ (b & 1))} offset:{2048*b}")
            for j in range(7):
                reg, off = (132, 192) if j == 6 else (130 + (j & 1), 32 * (j & ~1))
                for h in range(2):
                    d = fb + 16 + 4 * j + 2 * h
                    out.append(f"ds_read_b64_tr_b16 a[{d}:{d+1}], v{reg} offset:{448*(32*ks+4*h) + off}")
            return out

        def mfmas(fb):
            return [f"v_mfma_f32_16x16x32_bf16 v[{16*j+4*b}:{16*j+4*b+3}], a[{fb+16+4*j}:{fb+19+4*j}], "
                    f"a[{fb+4*b}:{fb+4*b+3}], v[{16*j+4*b}:{16*j+4*b+3}]" for j in range(7) for b in range(4)]

        self.main_loop("L_FLOOP", reads, mfmas, [128, 129, 130, 131, 132])
        self.z_reads()
        a(f"""s_mul_i32 s{T0}, s{CT}, {7*4096}
        s_add_u32 s{SSTR}, s{SSTR}, s{T0}
        s_lshl_b32 s{T0}, s{SWC}, 14
        s_add_u32 s{SSTR5}, s{SSTR}, s{T0}
        s_lshl_b32 s{T0}, s{SWC}, 10
        s_add_u32 s{SSTR}, s{SSTR}, s{T0}
        s_add_u32 s{SSTR}, s{SSTR}, {3*4096}
        s_mov_b32 s{T4}, {fbits(GELU_B)}
        s_mov_b32 s{T5}, {fbits(GELU_B)}
        v_mov_b32 v138, {fbits(GELU_A)}
        v_mov_b32 v139, {fbits(GELU_A)}
        s_mov_b32 s{T2}, {fbits(LOG2E)}
        s_mov_b32 s{T3}, {fbits(1e30)}
        s_waitcnt lgkmcnt(0)""")
        for r in (132, 133, 134, 135):
            a(f"v_mul_f32 v{r}, s{T2}, v{r}")
        for r in (132, 133, 134, 135):
            a(f"v_exp_f32 v{r}, v{r}")
        a("s_nop 0")
        for r in (132, 133, 134, 135):
            a(f"v_add_f32 v{r}, 1.0, v{r}")
        for r in (132, 133, 134, 135):
            a(f"v_min_f32 v{r}, s{T3}, v{r}")
        units = []
        for p in range(3):
            for b in range(4):
                units.append(([(16 * (2 * p) + 4 * b, b), (16 * (2 * p + 1) + 4 * b, b)], SSTR5, 1024 * b, p))
        for q in range(2):
            units.append(([(96 + 8 * q, 2 * q), (96 + 8 * q + 4, 2 * q + 1)], SSTR, 2048 * q, None))
        for u, (blks, sreg, off, p) in enumerate(units):
            t = 112 + 8 * (u & 1)
            pr = [(x + 2 * h, t + 4 * i + 2 * h, b) for i, (x, b) in enumerate(blks) for h in range(2)]
            for x, y, b in pr:
                a(f"v_pk_mul_f32 v[{y}:{y+1}], v[{x}:{x+1}], v[{x}:{x+1}]")
            for x, y, b in pr:
                a(f"v_pk_fma_f32 v[{y}:{y+1}], v[{y}:{y+1}], s[{T4}:{T5}], v[138:139]")
            for x, y, b in pr:
                a(f"v_pk_mul_f32 v[{y}:{y+1}], v[{y}:{y+1}], v[{x}:{x+1}]")
            for i in range(8):
                a(f"v_exp_f32 v{t+i}, v{t+i}")
            for x, y, b in pr:
                c = 132 + (b & ~1)
                s = b & 1
                a(f"v_pk_fma_f32 v[{y}:{y+1}], v[{y}:{y+1}], v[{c}:{c+1}], v[{c}:{c+1}] op_sel:[0,{s},{s}] op_sel_hi:[1,{s},{s}]")
            for i in range(8):
                a(f"v_rcp_f32 v{t+i}, v{t+i}")
            for x, y, b in pr:
                a(f"v_pk_mul_f32 v[{y}:{y+1}], v[{y}:{y+1}], v[{x}:{x+1}]")
            d = 140 if (u & 1) else 128
            for i in range(4):
                a(f"v_cvt_pk_bf16_f32 v{d+i}, v{t+2*i}, v{t+2*i+1}")
            a(f"buffer_store_dwordx4 v[{d}:{d+3}], v145, {R(SWS)}, s{sreg} offen offset:{off} sc1")
            if p is not None and off == 3072 and p < 2:
                a(f"s_add_u32 s{SSTR5}, s{SSTR5}, 4096")
        a("s_branch L_CDONE")

    def att(self):
        a = self.a
        a.label("L_C_ATT")
        a(f"""v_lshrrev_b32 v155, 1, v151
        v_mul_u32_u24 v155, 6144, v155
        v_and_b32 v156, 1, v151
        v_lshl_add_u32 v155, v156, 10, v155
        v_lshl_add_u32 v155, v152, 7, v155
        v_lshl_add_u32 v155, v153, 3, v155
        v_add_u32 v155, {BUF[0] + 18432}, v155
        v_lshrrev_b32 v157, 1, v152
        v_lshl_or_b32 v157, v156, 1, v157
        s_lshl_b32 s{T0}, s{SWC}, 1
        v_xor_b32 v157, s{T0}, v157
        v_lshl_add_u32 v130, v157, 5, v155
        v_xor_b32 v131, 32, v130
        v_add_u32 v155, 128, v150
        v_lshrrev_b32 v156, 3, v150
        v_lshl_add_u32 v156, v156, 3, v150
        v_add_u32 v156, 40, v156
        s_cmp_eq_u32 s{SWR}, 1
        s_cselect_b64 vcc, -1, 0
        v_cndmask_b32 v155, v155, v156, vcc
        v_bfe_u32 v156, v155, 1, 3
        v_bfe_u32 v157, v155, 4, 1
        v_lshlrev_b32 v157, 2, v157
        v_xor_b32 v156, v156, v157
        v_xor_b32 v156, v156, v151
        v_lshlrev_b32 v155, 7, v155
        v_lshl_add_u32 v155, v156, 4, v155
        v_add_u32 v132, {BUF[0]}, v155
        v_xor_b32 v133, 64, v132
        v_mov_b32 v155, {fbits(-1e30)}
        v_lshlrev_b32 v156, 2, v151
        v_sub_u32 v156, v150, v156
        s_or_b32 s{T0}, s{RT}, s{SWR}
        s_cmp_lg_u32 s{T0}, 0
        s_cselect_b64 s[{T2}:{T3}], -1, 0""")
        for r in range(4):
            a(f"""v_subrev_u32 v157, {r}, v156
            v_cmp_gt_u32 vcc, 8, v157
            s_nop 1
            v_cndmask_b32 v{112+r}, v155, 0, vcc
            v_cmp_ge_i32 vcc, -9, v157
            s_nop 1
            v_cndmask_b32 v{116+r}, v155, 0, vcc
            s_and_b64 vcc, vcc, s[{T2}:{T3}]
            v_cndmask_b32 v{120+r}, v155, 0, vcc
            v_cmp_ge_i32 vcc, -1, v157
            s_and_b64 vcc, vcc, s[{T2}:{T3}]
            s_mov_b32 vcc_hi, 0
            v_cndmask_b32 v{124+r}, v155, 0, vcc""")
        for i in range(112):
            a(f"v_mov_b32 v{i}, 0")
        Q = lambda hh, b: 16 * hh + 4 * b
        K = lambda hh, b: 32 + 20 * hh + 4 * b
        vpos = {3: 0, 1: 1, 4: 2, 0: 3, 2: 4}
        V = lambda hh, b: 72 + 20 * hh + 4 * vpos[b]

        def reads(ks, fb):
            out = []
            for b in range(4):
                out.append(f"ds_read_b128 a[{fb+4*b}:{fb+4*b+3}], v{128 + (ks ^ (b & 1))} offset:{2048*b}")
            out.append(f"ds_read_b128 a[{fb+16}:{fb+19}], v{132 + ks}")
            for seg in range(3):
                for hh in range(2):
                    for h in range(2):
                        d = fb + 20 + 8 * seg + 4 * hh + 2 * h
                        out.append(f"ds_read_b64_tr_b16 a[{d}:{d+1}], v{130+hh} offset:{12288*ks + 2048*seg + 512*h}")
            return out

        def mfmas(fb):
            out = []
            for seg, fn, nb in ((0, Q, 4), (1, K, 5), (2, V, 5)):
                for hh in range(2):
                    w = fb + 20 + 8 * seg + 4 * hh
                    for b in range(nb):
                        d, x = fn(hh, b), fb + 4 * b
                        p, q = (w, x) if seg < 2 else (x, w)
                        out.append(f"v_mfma_f32_16x16x32_bf16 v[{d}:{d+3}], a[{p}:{p+3}], a[{q}:{q+3}], v[{d}:{d+3}]")
            return out

        self.main_loop("L_ALOOP", reads, mfmas, [128, 129, 130, 131, 132, 133])
        self.z_reads()
        a(f"""s_lshl_b32 s{T0}, s{CT}, 1
        s_add_u32 s{T0}, s{T0}, s{SWC}
        s_add_u32 s{T0}, s{T0}, 56
        s_lshl_b32 s{T0}, s{T0}, 12
        s_add_u32 s{SSTR}, s{SSTR}, s{T0}
        s_mov_b32 s{T2}, {fbits(-LOG2E)}
        s_mov_b32 s{T4}, {fbits(0.25*LOG2E)}
        s_mov_b32 s{T5}, {fbits(0.25*LOG2E)}""")
        for base, n in ((0, 16), (32, 10), (52, 10), (72, 10), (92, 10)):
            for i in range(n):
                a(f"v_cvt_pk_bf16_f32 v{base+i}, v{base+2*i}, v{base+2*i+1}")
        a("s_waitcnt lgkmcnt(0)")
        for r in range(132, 136):
            a(f"v_mul_f32 v{r}, s{T2}, v{r}")
        for r in range(132, 136):
            a(f"v_exp_f32 v{r}, v{r}")
        for i in range(4):
            a(f"v_mov_b32 v{128+i}, 0x3f803f80")
        for r in range(132, 136):
            a(f"v_add_f32 v{r}, 1.0, v{r}")
        Qp = lambda hh, b: 8 * hh + 2 * b
        Kp = lambda hh, b: 32 + 20 * hh + 2 * b
        Vp = lambda hh, b: 72 + 20 * hh + 2 * vpos[b]
        prev = {0: 4, 1: 4, 2: 0, 3: 1}
        pmask = {0: 124, 1: 120, 2: 116, 3: 116}
        S = [16, 24, 42, 62]
        MX = [50, 70, 82, 102]
        OO = [84, 88, 104, 108]
        SUM = [136, 140, 146, 150]
        for hh in range(2):
            for b in range(4):
                cur, prv = (S[b] + 4, S[b]) if b in (0, 2) else (S[b], S[b] + 4)
                q = Qp(hh, b)
                k = Kp(hh, b)
                a(f"v_mfma_f32_16x16x16_bf16 v[{cur}:{cur+3}], v[{k}:{k+1}], v[{q}:{q+1}], v[112:115]")
                k = Kp(hh, prev[b])
                a(f"v_mfma_f32_16x16x16_bf16 v[{prv}:{prv+3}], v[{k}:{k+1}], v[{q}:{q+1}], v[{pmask[b]}:{pmask[b]+3}]")
            a("s_nop 7")
            for b in range(4):
                s, m = S[b], MX[b]
                a(f"v_max3_f32 v{m}, v{s}, v{s+1}, v{s+2}\nv_max3_f32 v{m+1}, v{s+3}, v{s+4}, v{s+5}")
            for b in range(4):
                s, m = S[b], MX[b]
                a(f"v_max3_f32 v{m}, v{m}, v{s+6}, v{s+7}")
            for b in range(4):
                m = MX[b]
                a(f"v_max_f32 v{m}, v{m}, v{m+1}")
            for sw in ("v_permlane16_swap_b32", "v_permlane32_swap_b32"):
                for b in range(4):
                    a(f"v_mov_b32 v{MX[b]+1}, v{MX[b]}")
                a("s_nop 1")
                for b in range(4):
                    a(f"{sw} v{MX[b]+1}, v{MX[b]}")
                a("s_nop 1")
                for b in range(4):
                    a(f"v_max_f32 v{MX[b]}, v{MX[b]}, v{MX[b]+1}")
            for b in range(4):
                a(f"v_mul_f32 v{MX[b]}, s{T4}, v{MX[b]}")
            for b in range(4):
                s, m = S[b], MX[b]
                for i in range(4):
                    a(f"v_pk_fma_f32 v[{s+2*i}:{s+2*i+1}], v[{s+2*i}:{s+2*i+1}], s[{T4}:{T5}], v[{m}:{m+1}] "
                      f"op_sel_hi:[1,1,0] neg_lo:[0,0,1] neg_hi:[0,0,1]")
            for b in range(4):
                for i in range(8):
                    a(f"v_exp_f32 v{S[b]+i}, v{S[b]+i}")
            a("s_nop 0")
            for b in range(4):
                for i in range(4):
                    a(f"v_cvt_pk_bf16_f32 v{S[b]+i}, v{S[b]+2*i}, v{S[b]+2*i+1}")
            a("s_nop 1")
            for b in range(4):
                s = S[b]
                v = min(Vp(hh, b), Vp(hh, prev[b]))
                a(f"v_mfma_f32_16x16x32_bf16 v[{SUM[b]}:{SUM[b]+3}], v[128:131], v[{s}:{s+3}], 0")
                a(f"v_mfma_f32_16x16x32_bf16 v[{OO[b]}:{OO[b]+3}], v[{v}:{v+3}], v[{s}:{s+3}], 0")
            a("s_nop 7")
            for b in range(4):
                a(f"v_mul_f32 v{SUM[b]}, v{SUM[b]}, v{132+b}")
            for b in range(4):
                a(f"v_rcp_f32 v{SUM[b]}, v{SUM[b]}")
            a("s_nop 0")
            for b in range(4):
                for i in range(2):
                    x = OO[b] + 2 * i
                    a(f"v_pk_mul_f32 v[{x}:{x+1}], v[{x}:{x+1}], v[{SUM[b]}:{SUM[b]+1}] op_sel_hi:[1,0]")
            if hh == 0:
                for b in range(4):
                    for i in range(2):
                        a(f"v_cvt_pk_bf16_f32 v{2*b+i}, v{OO[b]+2*i}, v{OO[b]+2*i+1}")
            else:
                for b in range(4):
                    s = S[b]
                    a(f"v_mov_b32 v{s}, v{2*b}\nv_mov_b32 v{s+1}, v{2*b+1}")
                    for i in range(2):
                        a(f"v_cvt_pk_bf16_f32 v{s+2+i}, v{OO[b]+2*i}, v{OO[b]+2*i+1}")
                    a(f"buffer_store_dwordx4 v[{s}:{s+3}], v145, {R(SWS)}, s{SSTR} offen offset:{1024*b} sc1")

    def lds_wait(self, off, ar=None, dr=151):
        a = self.a
        l1, l2 = self.lab("L_LW"), self.lab("L_LWX")
        if ar is None:
            ar = 150
            a(f"s_lshl_b32 s{T0}, s{LW}, 2\nv_mov_b32 v150, s{T0}")
        a(f"s_mov_b32 s{T1}, {POLL_MAX}")
        a.label(l1)
        a(f"""ds_read_b32 v{dr}, v{ar} offset:{off}
        s_sub_u32 s{T1}, s{T1}, 1
        s_cbranch_scc1 {l2}
        s_waitcnt lgkmcnt(0)
        v_cmp_ne_u32 vcc, 1, v{dr}
        s_cbranch_vccnz {l1}""")
        a.label(l2)

    def compute_tail(self):
        a = self.a
        a.label("L_CDONE")
        self.stamp(3)
        a(f"s_lshl_b32 s{T0}, s{LW}, 2\nv_mov_b32 v156, s{T0}\nds_read_b32 v155, v156 offset:{LANDED_OFF}")
        self.p2_setup()
        self.publish()
        self.tr_addr_setup()
        a(f"s_mov_b32 s{SD5}, 0\ns_waitcnt lgkmcnt(0)\nv_cmp_ne_u32 vcc, 1, v155\ns_cbranch_vccz L_CDRAIN")
        a(self.publish_store())
        a(f"s_mov_b32 s{SD5}, 1")
        self.lds_wait(LANDED_OFF, 156, 155)
        a.label("L_CDRAIN")
        for j in range(9):
            self.drain(j)
        a(f"s_cmp_eq_u32 s{SD5}, 1\ns_cbranch_scc1 L_CPUBX")
        a(self.publish_store())
        a.label("L_CPUBX")
        a(f"v_mov_b32 v151, 1\ns_waitcnt vmcnt(1) lgkmcnt(0)\nds_write_b32 v156, v151 offset:{DRAINED_OFF}")

    def flag_load(self):
        return f"buffer_load_dword v157, v159, {R(SWS)}, s{SK0} offen sc1"

    def poll(self, mask):
        a = self.a
        l1, l2, l3 = self.lab("L_PL"), self.lab("L_PLX"), self.lab("L_PLC")
        a(f"s_mov_b32 s{T1}, {POLL_MAX}")
        a.label(l3)
        a(f"v_cmp_ne_u32 vcc, s{SE}, v157\ns_and_b32 s{T0}, vcc_lo, {mask}\ns_cbranch_scc1 {l1}")
        a.label(l2)
        self.late.append(f"""{l1}:
        {self.flag_load()}
        s_sub_u32 s{T1}, s{T1}, 1
        s_cbranch_scc1 {l2}
        s_waitcnt vmcnt(0)
        s_branch {l3}""")

    def p2_setup(self):
        a = self.a
        a(f"""s_lshr_b32 s{T0}, s{M}, 1
        s_lshl_b32 s{T0}, s{T0}, 4
        s_add_u32 s{T0}, s{T0}, s{PW}
        s_lshl_b32 s{T0}, s{T0}, 8
        s_and_b32 s{T2}, s{M}, 1
        s_lshl_b32 s{T2}, s{T2}, 7
        s_add_u32 s{T0}, s{T0}, s{T2}
        s_add_u32 s{SK0}, s{T0}, {FLAG_OFF}
        v_and_b32 v159, 1, v{LANE}
        v_and_b32 v149, 2, v{LANE}
        v_lshlrev_b32 v159, 2, v159
        v_lshl_add_u32 v159, v149, 10, v159
        {self.flag_load()}
        v_lshlrev_b32 v149, 4, v{LANE}
        s_mul_i32 s{SSTR}, s{M}, {72*4096}
        s_lshl_b32 s{T2}, s{PW}, 13
        s_add_u32 s{SSTR5}, s{SSTR}, s{T2}
        s_add_u32 s{SSTR5}, s{SSTR5}, {56*4096}
        s_mul_i32 s{T2}, s{PW}, {7*4096}
        s_add_u32 s{SSTR}, s{SSTR}, s{T2}""")
        srd(a, SM, 18, 1024)

    def phase2(self):
        a = self.a
        a.label("L_P2")
        a(f"s_setprio {self.o['cp2']}")
        self.stamp(4)
        self.poll(12)
        dest = {0: ("v", 64), 1: ("v", 80), 2: ("v", 64), 3: ("v", 96), 4: ("v", 80), 5: ("v", 112),
                6: ("v", 64), 7: ("v", 128), 8: ("v", 96)}

        def loads(k):
            t, b = dest[k]
            s = SSTR5 if k < 2 else SSTR
            self.kstep(k, T3)
            a(f"s_lshl_b32 s{T3}, s{T3}, 12\ns_add_u32 s{T3}, s{T3}, s{s}")
            for rb in range(4):
                a(f"buffer_load_dwordx4 {vr(b+4*rb, 4, t)}, v149, {R(SWS)}, s{T3} offen offset:{1024*rb} sc1")

        def mm(k):
            t, b = dest[k]
            wt, wb = self.wreg(k)
            if k >= 2:
                a(f"s_cmp_eq_u32 s{SROT}, {(5 - k) % 7}\ns_cbranch_scc1 L_SWP{k}")
                a.label(f"L_SWPX{k}")
                sw = "".join(f"v_swap_b32 v{b+8*q+2+e}, v{b+8*q+4+e}\n" for q in range(2) for e in range(2))
                self.late.append(f"L_SWP{k}:\n{sw}s_nop 1\ns_branch L_SWPX{k}")
            for rb in range(4):
                for f in range(4):
                    d = 16 * rb + 4 * f
                    c = "0" if k == 0 else f"v[{d}:{d+3}]"
                    a(f"v_mfma_f32_16x16x32_bf16 v[{d}:{d+3}], {vr(wb+4*f, 4, wt)}, {vr(b+4*rb, 4, t)}, {c}")

        a(f"s_and_b32 s{SD5}, vcc_lo, 3")
        loads(0); loads(1)
        self.stamp(5)
        a(f"s_cmp_eq_u32 s{SD5}, 0\ns_cbranch_scc1 L_FAST")
        a(self.flag_load())
        a("s_waitcnt vmcnt(5) lgkmcnt(0)")
        mm(0)
        a("s_waitcnt vmcnt(1)")
        mm(1)
        a("s_waitcnt vmcnt(0)")
        self.poll(3)
        loads(2); loads(3); loads(4); loads(5)
        a("s_branch L_MERGE")
        a.label("L_FAST")
        a("s_waitcnt vmcnt(4) lgkmcnt(0)")
        mm(0)
        loads(2); loads(3)
        a("s_waitcnt vmcnt(8)")
        mm(1)
        loads(4); loads(5)
        a.label("L_MERGE")
        self.stamp(6)
        a(f"""s_lshl_b32 s{T0}, s{M}, 10
        s_lshl_b32 s{T2}, s{WAVE}, 7
        s_add_u32 s{T0}, s{T0}, s{T2}
        s_add_u32 s{T0}, s{T0}, {AUX_OFF}
        v_and_b32 v156, 0x38, v{LANE}
        buffer_load_dword v156, v156, {R(SWS)}, s{T0} offen sc1
        v_and_b32 v150, 7, v{LANE}
        v_lshlrev_b32 v150, 4, v150
        s_lshl_b32 s{T2}, s{N}, 7
        buffer_load_dwordx4 v[152:155], v150, {R(SM)}, s{T2} offen
        s_waitcnt vmcnt(14)""")
        mm(2)
        loads(6); loads(7)
        a("s_waitcnt vmcnt(18)")
        mm(3)
        loads(8)
        a(f"""v_and_b32 v150, 15, v{LANE}
        v_lshrrev_b32 v151, 4, v{LANE}
        v_and_b32 v157, 2, v151
        v_xor_b32 v150, v150, v157
        v_lshlrev_b32 v150, 4, v150
        v_lshl_add_u32 v150, v151, 8, v150
        s_lshl_b32 s{T0}, s{LW}, 12
        s_add_u32 s{T0}, s{T0}, 4096
        s_cmp_lt_u32 s{WAVE}, 4
        s_cselect_b32 s{T2}, 0x10000, 0
        s_add_u32 s{T0}, s{T0}, s{T2}
        v_add_u32 v145, s{T0}, v150""")
        for f in range(1, 4):
            a(f"v_xor_b32 v{145+f}, {64*f}, v145\nv_add_u32 v{145+f}, {1024*f}, v{145+f}")
        a("s_waitcnt vmcnt(18)")
        mm(4)
        a("s_waitcnt vmcnt(14)")
        mm(5)
        self.lds_wait(DRAINED_OFF)
        a("s_waitcnt vmcnt(8)")
        mm(6)
        a("s_waitcnt vmcnt(4)")
        mm(7)
        a("s_waitcnt vmcnt(0)")
        mm(8)
        self.stamp(7)
        a(f"""v_lshrrev_b32 v150, 3, v{LANE}
        s_and_b32 s{T0}, s{WAVE}, 1
        s_lshl_b32 s{T0}, s{T0}, 3
        v_add_u32 v150, s{T0}, v150
        v_and_b32 v151, 7, v{LANE}
        v_lshlrev_b32 v157, 1, v151
        v_xor_b32 v157, v157, v150
        v_lshlrev_b32 v157, 4, v157
        v_lshl_add_u32 v157, v151, 9, v157
        s_lshr_b32 s{T1}, s{WAVE}, 1
        s_lshl_b32 s{T2}, s{T1}, 14
        s_add_u32 s{T2}, s{T2}, 4096
        v_add_u32 v157, s{T2}, v157
        v_add_u32 v158, 0x10000, v157""")
        for rb in range(4):
            for f in range(4):
                d = 16 * rb + 4 * f
                a(f"ds_write_b128 v{145+f}, v[{d}:{d+3}] offset:{16384*rb}")
        a(f"""s_lshr_b32 s{T2}, s{T1}, 1
        s_lshl_b32 s{T2}, s{T2}, 5
        s_and_b32 s{T1}, s{T1}, 1
        s_add_u32 s{T2}, s{T2}, s{T1}
        s_lshl_b32 s{T1}, s{M}, 6
        s_add_u32 s{T2}, s{T2}, s{T1}
        v_lshl_add_u32 v150, v150, 1, s{T2}
        v_lshlrev_b32 v150, 10, v150
        v_lshl_add_u32 v150, v151, 4, v150
        s_lshl_b32 s{T2}, s{N}, 7""")
        a(f"v_mul_f32 v156, {fbits(LOG2E)}, v156\nv_exp_f32 v156, v156\ns_nop 0\nv_add_f32 v156, 1.0, v156\nv_rcp_f32 v156, v156")
        for i in range(4):
            a(f"v_lshlrev_b32 v{64+2*i}, 16, v{152+i}\nv_and_b32 v{65+2*i}, 0xffff0000, v{152+i}")
        for i in range(8):
            a(f"v_mul_f32 v{64+i}, v156, v{64+i}")
        a("s_waitcnt lgkmcnt(0)\ns_barrier")
        for pw in range(8):
            for gg in range(2):
                d = 8 * pw + 4 * gg
                a(f"ds_read_b128 v[{d}:{d+3}], v{157 + (pw >> 2)} offset:{4096*(pw & 3) + 256*gg}")
        for pw in range(8):
            a(f"s_waitcnt lgkmcnt({14 - 2*pw})")
            for i in range(4):
                a(f"v_pk_add_f32 v[{64+2*i}:{65+2*i}], v[{64+2*i}:{65+2*i}], v[{8*pw+2*i}:{8*pw+2*i+1}]")
        for i in range(4):
            a(f"v_cvt_pk_bf16_f32 v{72+i}, v{64+2*i}, v{65+2*i}")
        a(f"buffer_store_dwordx4 v[72:75], v150, {R(SOUT)}, s{T2} offen")
        if self.o["prof"]:
            a(f"s_waitcnt vmcnt(0)\ns_memtime s[4:5]\ns_getreg_b32 s6, hwreg(HW_REG_HW_ID)\ns_waitcnt lgkmcnt(0)")
            a(f"s_lshl_b32 s{T0}, s2, 3\ns_add_u32 s{T0}, s{T0}, s{WAVE}\ns_lshl_b32 s{T0}, s{T0}, 6\ns_add_u32 s{T0}, s{T0}, {STAMP_OFF}")
            a("s_mov_b64 exec, 1\nv_mov_b32 v1, 0")
            for i in range(10):
                src = f"s{STAMP0+2*i}" if i < 8 else ("s4" if i == 8 else "s6")
                a(f"v_mov_b32 v2, {src}\nbuffer_store_dword v2, v1, {R(SWS)}, s{T0} offen offset:{4*i}")
        if self.o["spin"] >= 0:
            a(f"s_lshr_b32 s{T0}, s{WAVE}, 2\ns_cmp_lg_u32 s{T0}, {self.o['spinw']}\ns_cbranch_scc1 L_END")
            a.label("L_SPIN")
            a("s_sleep 2\ns_memrealtime s[96:97]\ns_waitcnt lgkmcnt(0)\ns_sub_u32 s96, s96, s98\ns_cmp_lt_u32 s96, 4000\ns_cbranch_scc1 L_SPIN")
        a.label("L_END")
        a("s_endpgm")
        for t in self.late:
            a(t)

    def build(self):
        self.prologue()
        self.loader()
        self.compute_common_setup()
        self.ffn()
        self.att()
        self.compute_tail()
        self.phase2()
        ref = open(f"cdna_kernels/{KNAME}.s.ref").read().split("\n")
        head = [l for l in ref if l.startswith(";") and "@launch" not in l]
        name = KNAME + "_kernel"
        return ("\n".join(head) + "\n; @launch grid=(256,1,1) block=(512,1,1) lds=163840\n" + HEAD + kernel_open(name)
                + self.a.text() + '.section .rodata,"a"\n.p2align 6\n' + kernel_desc(name, 256, 160))

if __name__ == "__main__":
    out = sys.argv[1]
    kw = {}
    for s in sys.argv[2:]:
        k, v = s.split("=")
        kw[k] = int(v)
    open(out, "w").write(Gen(**kw).build())
```

```python
import sys, struct, math
from asmlib import *

def fbits(x):
    return "0x%08x" % struct.unpack("<I", struct.pack("<f", x))[0]

A2_BYTES = 32 * 72 * 4096
AUX_OFF = A2_BYTES
FLAG_OFF = AUX_OFF + 65536
WS_END = FLAG_OFF + 65536
STAMP_OFF = 0xA00000
BUF = [73728, 118784, 28672]
Z_OFF, LANDED_OFF, DRAINED_OFF = 1024, 1536, 1568
ZOWN_OFF, E_OFF, PROG_OFF = 0, 64, 1552
EPOCH_OFF = AUX_OFF + 49152
LOG2E = 1.4426950408889634
GELU_A = -2.0 * LOG2E * math.sqrt(2.0 / math.pi)
GELU_B = GELU_A * 0.044715
POLL_MAX = 1 << 18

SX, SW, SW2, SWO, SWS, SOUT, SDBG, SM = 28, 32, 36, 40, 44, 48, 52, 56
WAVE, RT, CT, TYPE, STG, M, N, LW = 60, 61, 62, 63, 64, 65, 66, 67
T0, T1, T2, T3, T4, T5 = 68, 69, 70, 71, 72, 73
SBUF, SCNT, SW0, SD5, SSTR, SSTR5, SEX = 74, 75, 76, 77, 78, 79, 80
SK0, SK1, SWR, SWC = 82, 83, 84, 85
STAMP0 = 86
SB1, PW, SE, SROT = 3, 10, 11, 75
LANE = 144

def srd(a, d, ptr, size):
    a(f"s_mov_b32 s{d}, s{ptr}\ns_mov_b32 s{d+1}, s{ptr+1}\ns_mov_b32 s{d+2}, {size}\ns_mov_b32 s{d+3}, 0x00020000")

def R(d, n=4):
    return f"s[{d}:{d+n-1}]"

def vr(b, n=1, t="v"):
    return f"{t}{b}" if n == 1 else f"{t}[{b}:{b+n-1}]"

class Gen:
    def __init__(self, **kw):
        self.o = dict(prof=False, o5=1, o6=3, o7=3, rot=True, cprio=1, lprio=0, spin=-1, spinw=1, abl=0, rot2=1, zs=2, zl=4, pf=3, cpl=0, cpe=1, cp2=0)
        self.o.update(kw)
        self.a = Asm()
        self.uid = 0
        self.late = []

    def lab(self, p):
        self.uid += 1
        return f"{p}_{self.uid}"

    def stamp(self, i):
        if self.o["spin"] == i:
            self.a("s_memrealtime s[98:99]\ns_waitcnt lgkmcnt(0)")
        if self.o["prof"] == 2 and i == 0:
            self.a("s_mov_b32 s98, 0\ns_mov_b32 s100, 0")
        if self.o["prof"] == 1 or (self.o["prof"] == 2 and i < 4):
            self.a(f"s_memtime s[{STAMP0+2*i}:{STAMP0+2*i+1}]\ns_waitcnt lgkmcnt(0)")

    def timed(self, text, acc):
        if self.o["prof"] == 2:
            self.a(f"s_memtime s[94:95]\n{text}\ns_memtime s[96:97]\ns_waitcnt lgkmcnt(0)\n"
                   f"s_sub_u32 s96, s96, s94\ns_add_u32 s{acc}, s{acc}, s96")
        else:
            self.a(text)

    def wreg(self, k):
        return ("v", 96 + 16 * k) if k < 3 else ("a", 16 * (k - 3))

    def prologue(self):
        a = self.a
        a("s_cmp_ge_u32 s2, 0x100\ns_cbranch_scc1 L_END")
        a("s_load_dwordx16 s[4:19], s[0:1], 0\ns_load_dwordx8 s[20:27], s[0:1], 64")
        self.stamp(0)
        a(f"""v_lshrrev_b32 v1, 6, v0
        v_and_b32 v{LANE}, 63, v0
        s_and_b32 s{T0}, s2, 7
        v_readfirstlane_b32 s{WAVE}, v1
        s_lshr_b32 s{T1}, s2, 3
        s_and_b32 s{T2}, s{T1}, 7
        s_lshr_b32 s{T3}, s{T1}, 3
        s_and_b32 s{RT}, s{T0}, 1
        s_lshl_b32 s{RT}, s{RT}, 3
        s_add_u32 s{RT}, s{RT}, s{T2}
        s_and_b32 s{CT}, s{T0}, 6
        s_lshr_b32 s{T4}, s{T3}, 1
        s_add_u32 s{CT}, s{CT}, s{T4}
        s_and_b32 s{TYPE}, s{T3}, 1
        s_lshl_b32 s{STG}, s{T3}, {1 if self.o['rot'] == 1 else 0}
        s_add_u32 s{STG}, s{STG}, s{T2}
        s_lshl_b32 s{STG}, s{STG}, {max(self.o['rot'] - 1, 0)}
        s_and_b32 s{STG}, s{STG}, {7 if self.o['rot'] else 0}
        s_lshl_b32 s{M}, s{T0}, 2
        s_and_b32 s{T4}, s{T1}, 3
        s_add_u32 s{M}, s{M}, s{T4}
        s_lshr_b32 s{N}, s{T1}, 2
        s_and_b32 s{LW}, s{WAVE}, 3
        s_waitcnt lgkmcnt(0)""")
        srd(a, SX, 4, 2097152)
        a(f"s_cmp_ge_u32 s{WAVE}, 4\ns_cbranch_scc1 L_COMPUTE")

    def p2_roles(self):
        a = self.a
        if not self.o["rot2"]:
            a(f"s_mov_b32 s{PW}, s{WAVE}\ns_mov_b32 s{SB1}, 0\ns_mov_b32 s{SROT}, 0")
            return
        a(f"""s_xor_b32 s{T0}, s{M}, s{N}
        s_and_b32 s{T0}, s{T0}, 1
        s_lshl_b32 s{T0}, s{T0}, 2
        s_xor_b32 s{PW}, s{WAVE}, s{T0}
        s_bfe_u32 s{SB1}, s{M}, 0x10001
        s_mul_i32 s{T0}, s{SB1}, 3
        s_add_u32 s{SROT}, s{N}, s{T0}
        s_sub_u32 s{T0}, s{SROT}, 7
        s_cselect_b32 s{SROT}, s{SROT}, s{T0}""")

    def kstep(self, k, dst):
        a = self.a
        if k < 2:
            a(f"s_xor_b32 s{dst}, s{SB1}, {k}")
        else:
            a(f"s_add_u32 s{dst}, s{SROT}, {k - 2}\ns_sub_u32 s{T5}, s{dst}, 7\ns_cselect_b32 s{dst}, s{dst}, s{T5}")

    def late_srds(self):
        a = self.a
        self.p2_roles()
        srd(a, SWS, 26, hex(STAMP_OFF + 0x40000 if self.o["prof"] else WS_END))
        srd(a, SDBG, 24, 256)
        srd(a, SOUT, 22, 2097152)

    def issue_stage(self, bufreg, mid=None):
        a = self.a
        a(f"s_lshl_b32 s{T0}, s{STG}, 7\ns_mul_i32 s{T1}, s{STG}, s{SSTR5}\ns_mul_i32 s{T2}, s{STG}, s{SSTR}")
        a(f"s_lshl_b32 s{T3}, s{LW}, 12\ns_add_u32 m0, s{bufreg}, s{T3}")
        a(f"s_add_u32 s{STG}, s{STG}, 1")
        for i in range(4):
            a(f"buffer_load_dwordx4 v{2+i}, {R(SX)}, s{T0} offen lds")
            if i < 3:
                a("s_add_u32 m0, m0, 0x400\ns_nop 0")
        a(f"s_add_u32 m0, s{bufreg}, s{SD5}\ns_mov_b64 exec, s[{SEX}:{SEX+1}]")
        a(f"buffer_load_dwordx4 v6, {R(SM)}, s{T1} offen lds")
        a(f"s_add_u32 m0, s{bufreg}, s{SW0}\ns_mov_b64 exec, -1")
        for t in range(6):
            a(f"buffer_load_dwordx4 v{7+t}, {R(SW)}, s{T2} offen lds")
            if t < 5:
                a("s_add_u32 m0, m0, 0x400\ns_nop 0")
            if t == 2 and mid:
                mid()
        a(f"s_and_b32 s{STG}, s{STG}, 7")

    def next_buf(self):
        a = self.a
        a(f"""s_add_u32 s{SBUF}, s{SBUF}, 45056
        s_cmp_gt_u32 s{SBUF}, {BUF[1]}
        s_cselect_b32 s{SBUF}, {BUF[2]}, s{SBUF}""")

    def w2_dma(self, k, partner):
        a = self.a
        s, mul = (SWO, 2) if k < 2 else (SW2, 7)
        self.kstep(k, T2)
        a(f"s_xor_b32 s{T0}, s{PW}, {4 if partner else 0}\ns_lshl_b32 s{T1}, s{LW}, 12\ns_mul_i32 s{T0}, s{T0}, {mul}")
        a(f"s_add_u32 m0, s{T1}, {4096 + 16384 * k}\ns_add_u32 s{T0}, s{T0}, s{T2}\ns_lshl_b32 s{T0}, s{T0}, 15")
        if self.o["abl"] & 512:
            a(f"s_lshl_b32 s{T0}, s{LW}, 15")
        for i in range(4):
            a(f"buffer_load_dwordx4 v{16+i}, {R(s)}, s{T0} offen lds")
            if i < 3:
                a("s_add_u32 m0, m0, 0x400\ns_nop 0")

    def tr_addr_setup(self):
        a = self.a
        a(f"""v_lshrrev_b32 v150, 2, v{LANE}
        v_and_b32 v151, 3, v{LANE}
        v_lshlrev_b32 v145, 7, v150
        v_lshl_add_u32 v145, v151, 3, v145
        v_bfe_u32 v150, v150, 1, 2
        v_lshl_add_u32 v145, v150, 5, v145
        s_lshl_b32 s{T0}, s{LW}, 12
        s_add_u32 s{T0}, s{T0}, 4096
        v_add_u32 v145, s{T0}, v145
        v_xor_b32 v146, 32, v145
        v_xor_b32 v147, 64, v145
        v_xor_b32 v148, 0x60, v145""")

    def drain(self, k):
        a = self.a
        t, b = self.wreg(k)
        if k in (4, 8):
            for f in range(4):
                a(f"v_add_u32 v{145+f}, 0x10000, v{145+f}")
        for f in range(4):
            for h in range(2):
                a(f"ds_read_b64_tr_b16 {vr(b+4*f+2*h, 2, t)}, v{145+f} offset:{16384*(k%4)+2048*h}")

    def z_check(self):
        a = self.a
        a(f"s_mov_b32 s{T1}, {POLL_MAX}\nv_cmp_ne_u32 vcc, s{SE}, v15\ns_cbranch_vccnz L_ZPOLL")
        a.label("L_ZGOT")
        a(f"ds_write_b32 v13, v14 offset:{Z_OFF}")
        self.late.append(f"""L_ZPOLL:
        buffer_load_dwordx2 v[14:15], v24, {R(SWS)}, s{SK0} offen sc1
        s_sub_u32 s{T1}, s{T1}, 1
        s_cbranch_scc1 L_ZGOT
        s_waitcnt vmcnt(0)
        v_cmp_ne_u32 vcc, s{SE}, v15
        s_cbranch_vccnz L_ZPOLL
        s_branch L_ZGOT""")

    def loader(self):
        a, o = self.a, self.o
        if o["lprio"]:
            a(f"s_setprio {o['lprio']}")
        a(f"""v_lshrrev_b32 v16, 3, v{LANE}
        v_lshrrev_b32 v17, 4, v{LANE}
        v_and_b32 v18, 7, v{LANE}
        v_xor_b32 v19, v18, v17
        s_lshl_b32 s{T0}, s{RT}, 7
        s_lshl_b32 s{T1}, s{LW}, 5
        s_add_u32 s{T1}, s{T1}, s{T0}
        v_lshl_add_u32 v2, v16, 1, s{T1}
        v_lshlrev_b32 v2, 10, v2
        v_lshl_add_u32 v2, v19, 4, v2
        v_xor_b32 v4, 64, v2
        v_add_u32 v5, 17408, v2
        v_add_u32 v3, 16384, v4
        v_add_u32 v4, 1024, v4
        s_cmp_eq_u32 s{TYPE}, 1
        s_cbranch_scc1 L_LSET_ATT""")
        srd(a, SW, 12, 1835008)
        srd(a, SM, 12, 1835008)
        a(f"""s_mov_b32 s{SSTR}, 229376
        s_mov_b32 s{SSTR5}, 229376
        s_mov_b64 s[{SEX}:{SEX+1}], -1
        s_mul_i32 s{SD5}, s{LW}, 7168
        s_add_u32 s{SD5}, s{SD5}, 16384
        s_add_u32 s{SW0}, s{SD5}, 1024
        s_mul_i32 s{T0}, s{LW}, {16*3584}
        s_mul_i32 s{T1}, s{CT}, 448
        s_add_u32 s{T0}, s{T0}, s{T1}
        s_movk_i32 s{T1}, 2341
        s_movk_i32 s{T2}, 3584""")
        for i in range(7):
            a(f"""v_add_u32 v20, {64*i}, v{LANE}
            v_mul_u32_u24 v21, s{T1}, v20
            v_lshrrev_b32 v21, 16, v21
            v_mul_u32_u24 v22, 28, v21
            v_sub_u32 v22, v20, v22
            v_lshrrev_b32 v23, 3, v21
            v_lshlrev_b32 v23, 1, v23
            v_xor_b32 v22, v22, v23
            v_mul_u32_u24 v21, s{T2}, v21
            v_lshl_add_u32 v21, v22, 4, v21
            v_add_u32 v{6+i}, s{T0}, v21""")
        a("s_branch L_LSET_DONE")
        a.label("L_LSET_ATT")
        srd(a, SW, 6, 1572864)
        srd(a, SM, 4, 2097152)
        a(f"""s_mov_b32 s{SSTR}, 196608
        s_movk_i32 s{SSTR5}, 128
        s_mov_b32 s{SEX}, -1
        s_mov_b32 s{SEX+1}, 0
        s_lshl_b32 s{SD5}, s{LW}, 9
        s_add_u32 s{SD5}, s{SD5}, 16384
        s_mul_i32 s{SW0}, s{LW}, 6144
        s_add_u32 s{SW0}, s{SW0}, 18432
        s_lshl_b32 s{T1}, s{LW}, 2
        v_add_u32 v20, s{T1}, v16
        v_and_b32 v21, 7, v20
        v_lshlrev_b32 v21, 1, v21
        v_bfe_u32 v22, v20, 3, 1
        s_sub_u32 s{T0}, s{T0}, 16
        v_add3_u32 v21, v21, v22, s{T0}
        v_max_i32 v21, 0, v21
        v_bfe_u32 v22, v20, 1, 3
        v_xor_b32 v22, v22, v18
        v_lshlrev_b32 v21, 10, v21
        v_lshl_add_u32 v6, v22, 4, v21
        s_mul_i32 s{T0}, s{LW}, {16*3072}
        s_lshl_b32 s{T1}, s{CT}, 7
        s_add_u32 s{T0}, s{T0}, s{T1}
        s_movk_i32 s{T2}, 3072
        v_mul_u32_u24 v20, s{T2}, v16
        v_and_b32 v21, 1, v17
        v_lshlrev_b32 v21, 1, v21
        v_xor_b32 v21, v21, v18
        v_lshl_add_u32 v20, v21, 4, v20
        v_add_u32 v7, s{T0}, v20
        v_xor_b32 v20, 64, v20
        v_add_u32 v20, {8*3072}, v20
        v_add_u32 v8, s{T0}, v20
        v_add_u32 v9, 1024, v7
        v_add_u32 v10, 1024, v8
        v_add_u32 v11, 2048, v7
        v_add_u32 v12, 2048, v8""")
        a.label("L_LSET_DONE")
        a(f"s_mov_b32 s{SBUF}, {BUF[0]}")
        self.issue_stage(SBUF)
        self.next_buf()
        self.issue_stage(SBUF)
        self.next_buf()
        self.stamp(1)
        a(f"""v_and_b32 v13, 31, v{LANE}
        v_lshlrev_b32 v13, 2, v13
        s_lshl_b32 s{T0}, s{LW}, 7
        v_add_u32 v13, s{T0}, v13
        v_bfe_u32 v24, v{LANE}, 3, 2
        v_lshlrev_b32 v24, 7, v24
        v_lshl_add_u32 v24, v18, 3, v24
        s_lshl_b32 s{T0}, s{RT}, 11
        s_lshl_b32 s{T1}, s{LW}, 9
        s_add_u32 s{T0}, s{T0}, {AUX_OFF}
        s_add_u32 s{SK0}, s{T0}, s{T1}
        s_lshl_b32 s{T1}, s{TYPE}, 3
        s_add_u32 s{T1}, s{T1}, s{CT}
        s_lshl_b32 s{T1}, s{T1}, 7
        s_add_u32 s{SK1}, s{T0}, s{T1}
        v_lshlrev_b32 v19, 1, v17
        v_xor_b32 v19, v19, v18
        v_lshlrev_b32 v16, 10, v16
        v_lshl_add_u32 v16, v19, 4, v16
        s_lshl_b32 s{T0}, s{N}, 7
        v_add_u32 v16, s{T0}, v16
        v_add_u32 v17, 8192, v16
        v_add_u32 v18, 16384, v16
        v_add_u32 v19, 24576, v16""")
        srd(a, SW2, 16, 1835008)
        srd(a, SWO, 8, 524288)
        self.late_srds()
        self.tr_addr_setup()
        srd(a, SOUT, 18, 1024)
        a(f"s_lshl_b32 s{T0}, s{N}, 7\nbuffer_load_dword v25, off, {R(SOUT)}, s{T0}")
        srd(a, SOUT, 22, 2097152)
        zs = o["zs"]
        for it in range(6):
            if it == 0:
                a("s_waitcnt vmcnt(12)")
            elif it == zs:
                a(f"s_cmp_eq_u32 s{LW}, 0\ns_cbranch_scc1 L_W12\ns_waitcnt vmcnt(11)")
                a.label("L_W12")
                a("s_waitcnt vmcnt(12)")
            else:
                a("s_waitcnt vmcnt(11)")
            a("s_barrier")
            if it == zs - 2:
                a(f"buffer_load_dword v14, off, {R(SDBG)}, 0 sc1")
            if it == zs - 1:
                a(f"s_mov_b32 s{T1}, {POLL_MAX}\nv_cmp_eq_u32 vcc, 0, v14\ns_cbranch_vccnz L_EPOLL")
                a.label("L_EGOT")
                a(f"v_readfirstlane_b32 s{SE}, v14\nv_lshlrev_b32 v20, 2, v{LANE}\nds_read_b32 v22, v20 offset:{ZOWN_OFF}")
                self.late.append(f"""L_EPOLL:
                buffer_load_dword v14, off, {R(SDBG)}, 0 sc1
                s_sub_u32 s{T1}, s{T1}, 1
                s_cbranch_scc1 L_EGOT
                s_waitcnt vmcnt(0)
                v_cmp_eq_u32 vcc, 0, v14
                s_cbranch_vccnz L_EPOLL
                s_branch L_EGOT""")
            if it == o["zl"]:
                a(f"buffer_load_dwordx2 v[14:15], v24, {R(SWS)}, s{SK0} offen sc1")
            if it == o["zl"] + 1:
                self.z_check()
            if not o["abl"] & 4:
                self.issue_stage(SBUF)
            self.next_buf()
            if it == zs - 1:
                a(f"""s_cmp_lg_u32 s{LW}, 0
                s_cbranch_scc1 L_NOZST
                v_mov_b32 v23, v14
                v_lshlrev_b32 v21, 3, v{LANE}
                s_mov_b64 exec, 0xff
                s_waitcnt lgkmcnt(0)
                buffer_store_dwordx2 v[22:23], v21, {R(SWS)}, s{SK1} offen sc1
                ds_write_b32 v20, v23 offset:{E_OFF}
                s_mov_b64 exec, -1""")
                a.label("L_NOZST")
        k = 0
        for _ in range(o["o5"]):
            self.w2_dma(k, False); k += 1
        a(f"v_and_b32 v20, 3, v{LANE}\nv_lshlrev_b32 v20, 2, v20")
        a(f"s_waitcnt vmcnt({4*k}) lgkmcnt(0)\ns_barrier")
        if o["abl"] & 64:
            self.stamp(1)
        for i in range(o["o6"]):
            self.w2_dma(k, False); k += 1
        self.lds_wait(PROG_OFF, 20, 21)
        for _ in range(o["o7"]):
            self.w2_dma(k, False); k += 1
        self.lds_wait(PROG_OFF + 32, 20, 21)
        self.stamp(2)
        while k < 9:
            self.w2_dma(k, False); k += 1
        self.p2_setup()
        pf = o["pf"]
        for j in range(9):
            a(f"s_waitcnt vmcnt({33 if j > 9 - pf else 32})")
            self.drain(j)
            if j == 9 - pf:
                a(self.flag_load())
            a("s_waitcnt lgkmcnt(0)")
            self.w2_dma(j, True)
        a(f"""s_lshl_b32 s{T0}, s{LW}, 2
        v_mov_b32 v24, s{T0}
        v_mov_b32 v25, 1
        s_waitcnt vmcnt({4*pf})
        v_cmp_ne_u32 vcc, s{SE}, v157
        s_and_b32 s{T0}, vcc_lo, 12
        s_cbranch_scc1 L_LSLOW
        s_and_b32 s{SD5}, vcc_lo, 3""")
        self.a2_loads(0); self.a2_loads(1)
        a(f"s_waitcnt vmcnt(8)\nds_write_b32 v24, v25 offset:{LANDED_OFF}")
        self.stamp(3)
        self.stamp(4)
        a(f"s_setprio {self.o['cp2']}\ns_branch L_P2B")
        a.label("L_LSLOW")
        a(f"{self.flag_load()}\ns_waitcnt vmcnt(1)\nds_write_b32 v24, v25 offset:{LANDED_OFF}\ns_waitcnt vmcnt(0)")
        self.stamp(3)
        a("s_branch L_P2")

    def compute_common_setup(self):
        a, o = self.a, self.o
        a.label("L_COMPUTE")
        if o["cprio"]:
            a(f"s_setprio {o['cprio']}")
        self.late_srds()
        a(f"s_lshl_b32 s{T0}, s2, 3\ns_add_u32 s{T0}, s{T0}, s{WAVE}\ns_cmp_eq_u32 s{T0}, 5\ns_cbranch_scc1 L_EPUB")
        a.label("L_EPUBX")
        self.late.append(f"""L_EPUB:
        s_mov_b32 s{T0}, {EPOCH_OFF}
        s_mov_b64 exec, 1
        buffer_load_dword v2, off, {R(SWS)}, s{T0} sc1
        s_waitcnt vmcnt(0)
        v_add_u32 v2, 0x9e3779b9, v2
        v_max_u32 v2, 1, v2
        buffer_store_dword v2, off, {R(SDBG)}, 0 sc1
        buffer_store_dword v2, off, {R(SWS)}, s{T0} sc1
        s_mov_b64 exec, -1
        s_branch L_EPUBX""")
        a(f"""s_lshr_b32 s{SWR}, s{LW}, 1
        s_and_b32 s{SWC}, s{LW}, 1
        v_lshrrev_b32 v151, 4, v{LANE}
        s_cmp_eq_u32 s{TYPE}, 1
        s_cbranch_scc1 L_NOB1""")
        srd(a, SM, 14, 3584)
        a(f"""s_mul_i32 s{T0}, s{CT}, 448
        s_lshl_b32 s{T1}, s{SWC}, 8
        s_add_u32 s{T1}, s{T1}, s{T0}
        s_lshl_b32 s{T2}, s{SWC}, 5
        s_add_u32 s{T2}, s{T2}, s{T0}
        v_lshlrev_b32 v155, 3, v151""")
        for j in range(6):
            a(f"buffer_load_dwordx2 v[{112+2*j}:{113+2*j}], v155, {R(SM)}, s{T1} offen offset:{32*j}")
        a(f"buffer_load_dwordx2 v[124:125], v155, {R(SM)}, s{T2} offen offset:192")
        a.label("L_NOB1")
        a(f"""s_cmp_lg_u32 s{LW}, 0
        s_cbranch_scc1 L_NOZLD
        s_lshl_b32 s{T0}, s{RT}, 1
        s_add_u32 s{T0}, s{T0}, s{TYPE}
        s_lshl_b32 s{T0}, s{T0}, 1
        s_lshr_b32 s{T1}, s{CT}, 2
        s_add_u32 s{T0}, s{T0}, s{T1}
        s_lshl_b32 s{T0}, s{T0}, 1
        s_and_b32 s{T1}, s{CT}, 1
        s_add_u32 s{T0}, s{T0}, s{T1}
        s_lshl_b32 s{T0}, s{T0}, 4
        s_bfe_u32 s{T1}, s{CT}, 0x10001
        s_add_u32 s{T0}, s{T0}, s{T1}
        s_lshl_b32 s{T0}, s{T0}, 10
        v_lshlrev_b32 v1, 4, v{LANE}""")
        srd(a, SW, 20, 1024)
        for j in range(8):
            a(f"buffer_load_dwordx4 v[{16+4*j}:{19+4*j}], v1, {R(SX)}, s{T0} offen offset:{2048*(j&1)}")
            if j & 1 and j < 7:
                a(f"s_add_u32 s{T0}, s{T0}, 4096")
        a(f"buffer_load_dwordx4 v[12:15], v1, {R(SW)}, 0 offen")
        a.label("L_NOZLD")
        a(f"""s_lshl_b32 s{T0}, s{RT}, 4
        s_lshl_b32 s{T1}, s{TYPE}, 3
        s_add_u32 s{T0}, s{T0}, s{T1}
        s_add_u32 s{SD5}, s{T0}, s{CT}
        s_cmp_lg_u32 s{LW}, 0
        s_cbranch_scc1 L_NOCLR
        v_mov_b32 v2, 0
        v_lshlrev_b32 v1, 2, v{LANE}
        s_mov_b64 exec, 0xffff
        ds_write_b32 v1, v2 offset:{LANDED_OFF}
        s_mov_b64 exec, -1""")
        for j in range(8):
            a(f"v_mov_b32 v{4+j}, 0")
        a(f"v_lshrrev_b32 v1, 1, v{LANE}\ns_waitcnt vmcnt(0)")
        for i in range(4):
            for j in range(8):
                a(f"v_dot2c_f32_bf16 v{4+j}, v{16+4*j+i}, v{12+i}")
        a("s_nop 2")
        for j in range(4):
            a(f"v_permlane32_swap_b32 v{4+j}, v{8+j}")
        a("s_nop 1")
        for j in range(4):
            a(f"v_add_f32 v{4+j}, v{4+j}, v{8+j}")
        a("s_nop 1")
        for j in range(2):
            a(f"v_permlane16_swap_b32 v{4+j}, v{6+j}")
        a("s_nop 1")
        for j in range(2):
            a(f"v_add_f32 v{4+j}, v{4+j}, v{6+j}")
        a("""s_nop 1
        v_add_f32_dpp v6, v4, v4 row_ror:8 row_mask:0xf bank_mask:0x3
        v_add_f32_dpp v6, v5, v5 row_ror:8 row_mask:0xf bank_mask:0xc""")
        for mode in ("quad_perm:[1,0,3,2]", "quad_perm:[2,3,0,1]", "row_half_mirror"):
            a(f"s_nop 1\nv_add_f32_dpp v6, v6, v6 {mode} row_mask:0xf bank_mask:0xf")
        a(f"""s_mov_b32 s{T2}, 0x01010101
        s_mov_b32 s{T3}, 0x01010101
        s_mov_b64 exec, s[{T2}:{T3}]
        ds_write_b32 v1, v6 offset:{ZOWN_OFF}
        s_mov_b64 exec, -1""")
        a.label("L_NOCLR")
        a(f"""v_and_b32 v150, 15, v{LANE}
        v_bfe_u32 v152, v{LANE}, 2, 2
        v_and_b32 v153, 3, v{LANE}
        v_lshrrev_b32 v154, 1, v150
        v_xor_b32 v154, v154, v151
        s_lshl_b32 s{T0}, s{SWR}, 13
        s_add_u32 s{T0}, s{T0}, {BUF[0]}
        v_lshl_add_u32 v128, v150, 7, s{T0}
        v_lshl_add_u32 v128, v154, 4, v128
        v_xor_b32 v129, 64, v128
        s_lshl_b32 s{T0}, s{LW}, 2
        v_mov_b32 v134, s{T0}
        v_mov_b32 v135, 1
        s_mov_b32 s{SBUF}, {BUF[0]}
        s_cmp_eq_u32 s{TYPE}, 1
        s_cbranch_scc1 L_C_ATT""")

    def main_loop(self, name, reads, mfmas, addr_regs):
        a = self.a
        a(f"s_waitcnt lgkmcnt(0)\ns_setprio {self.o['cpl']}\ns_barrier")
        self.stamp(1)
        for r in reads(0, 0):
            a(r)
        a(f"s_mov_b32 s{SK1}, 8")
        a.label(name)
        self.timed("s_waitcnt lgkmcnt(0)", 98)
        rd = reads(1, 44) if not self.o["abl"] & 2 else []
        for i, m in enumerate(mfmas(0)):
            a(m)
            if i < len(rd):
                a(rd[i])
            if i == 20:
                a(f"""s_add_u32 s{T4}, s{SBUF}, 45056
                s_cmp_gt_u32 s{T4}, {BUF[1]}
                s_cselect_b32 s{T4}, {BUF[2]}, s{T4}
                s_sub_u32 s{T5}, s{T4}, s{SBUF}
                s_mov_b32 s{SBUF}, s{T4}
                s_sub_u32 s{SK1}, s{SK1}, 1""")
            if 21 <= i < 21 + len(addr_regs):
                r = addr_regs[i - 21]
                a(f"v_add_u32 v{r}, s{T5}, v{r}")
        self.timed("s_waitcnt lgkmcnt(0)", 98)
        a(f"s_cmp_le_u32 s{SK1}, 1\ns_cbranch_scc1 {name}_SIG\ns_barrier")
        a.label(name + "_BACK")
        self.late.append(f"{name}_SIG:\nds_write_b32 v134, v135 offset:{PROG_OFF}\nv_add_u32 v134, 32, v134\ns_branch {name}_BACK")
        rd = reads(0, 0) if not self.o["abl"] & 2 else []
        for i, m in enumerate(mfmas(44)):
            a(m)
            if i < len(rd):
                a(rd[i])
        a(f"s_cmp_lg_u32 s{SK1}, 0\ns_cbranch_scc1 {name}\ns_setprio {self.o['cpe']}")
        self.stamp(2)

    def z_reads(self):
        a = self.a
        a(f"""s_lshl_b32 s{T0}, s{SWR}, 8
        v_lshl_add_u32 v136, v150, 2, s{T0}
        s_waitcnt lgkmcnt(0)""")
        for b in range(4):
            a(f"ds_read_b32 v{132+b}, v136 offset:{Z_OFF + 64*b}")
        a(f"v_mov_b32 v159, 0\nds_read_b32 v158, v159 offset:{E_OFF}")
        a(f"""s_lshl_b32 s{T0}, s{RT}, 1
        s_add_u32 s{T0}, s{T0}, s{SWR}
        s_mul_i32 s{SSTR}, s{T0}, {72*4096}
        v_lshlrev_b32 v145, 4, v{LANE}""")

    def publish(self):
        a = self.a
        a(f"""s_lshl_b32 s{T0}, s{SD5}, 8
        s_lshl_b32 s{T1}, s{SWR}, 7
        s_lshl_b32 s{T2}, s{SWC}, 2
        s_add_u32 s{T0}, s{T0}, s{T1}
        s_add_u32 s{T2}, s{T2}, {FLAG_OFF}
        s_add_u32 s{SW0}, s{T0}, s{T2}
        v_readfirstlane_b32 s{SE}, v158""")

    def publish_store(self, n):
        return f"""s_waitcnt vmcnt({n})
        s_mov_b64 exec, 1
        buffer_store_dword v158, off, {R(SWS)}, s{SW0} sc1
        s_mov_b64 exec, -1"""

    def ffn(self):
        a = self.a
        a(f"""s_movk_i32 s{T0}, 448
        v_lshl_add_u32 v155, v151, 3, v152
        v_mul_u32_u24 v155, s{T0}, v155
        v_lshl_add_u32 v155, v153, 3, v155
        v_add_u32 v155, {BUF[0] + 16384}, v155
        v_and_b32 v156, 1, v151
        s_lshl_b32 s{T1}, s{SWC}, 8
        v_lshl_add_u32 v130, v156, 5, v155
        v_add_u32 v130, s{T1}, v130
        v_xor_b32 v157, 1, v156
        v_lshl_add_u32 v131, v157, 5, v155
        v_add_u32 v131, s{T1}, v131
        v_xor_b32 v157, s{SWC}, v156
        v_lshl_add_u32 v132, v157, 5, v155
        s_cmp_eq_u32 s{LW}, 0
        s_cbranch_scc1 L_B1OK
        s_waitcnt vmcnt(0)""")
        a.label("L_B1OK")
        for j in range(7):
            for b in range(4):
                d = 16 * j + 4 * b
                a(f"""v_lshlrev_b32 v{d}, 16, v{112+2*j}
                v_and_b32 v{d+1}, 0xffff0000, v{112+2*j}
                v_lshlrev_b32 v{d+2}, 16, v{113+2*j}
                v_and_b32 v{d+3}, 0xffff0000, v{113+2*j}""")

        def reads(ks, fb):
            out = []
            for b in range(4):
                out.append(f"ds_read_b128 a[{fb+4*b}:{fb+4*b+3}], v{128 + (ks ^ (b & 1))} offset:{2048*b}")
            for j in range(7):
                reg, off = (132, 192) if j == 6 else (130 + (j & 1), 32 * (j & ~1))
                for h in range(2):
                    d = fb + 16 + 4 * j + 2 * h
                    out.append(f"ds_read_b64_tr_b16 a[{d}:{d+1}], v{reg} offset:{448*(32*ks+4*h) + off}")
            return out

        def mfmas(fb):
            return [f"v_mfma_f32_16x16x32_bf16 v[{16*j+4*b}:{16*j+4*b+3}], a[{fb+16+4*j}:{fb+19+4*j}], "
                    f"a[{fb+4*b}:{fb+4*b+3}], v[{16*j+4*b}:{16*j+4*b+3}]" for j in range(7) for b in range(4)]

        self.main_loop("L_FLOOP", reads, mfmas, [128, 129, 130, 131, 132])
        self.z_reads()
        a(f"""s_mul_i32 s{T0}, s{CT}, {7*4096}
        s_add_u32 s{SSTR}, s{SSTR}, s{T0}
        s_lshl_b32 s{T0}, s{SWC}, 14
        s_add_u32 s{SSTR5}, s{SSTR}, s{T0}
        s_lshl_b32 s{T0}, s{SWC}, 10
        s_add_u32 s{SSTR}, s{SSTR}, s{T0}
        s_add_u32 s{SSTR}, s{SSTR}, {3*4096}
        s_mov_b32 s{T4}, {fbits(GELU_B)}
        s_mov_b32 s{T5}, {fbits(GELU_B)}
        v_mov_b32 v138, {fbits(GELU_A)}
        v_mov_b32 v139, {fbits(GELU_A)}
        s_mov_b32 s{T2}, {fbits(LOG2E)}
        s_mov_b32 s{T3}, {fbits(1e30)}
        s_waitcnt lgkmcnt(0)""")
        for r in (132, 133, 134, 135):
            a(f"v_mul_f32 v{r}, s{T2}, v{r}")
        for r in (132, 133, 134, 135):
            a(f"v_exp_f32 v{r}, v{r}")
        a("s_nop 0")
        for r in (132, 133, 134, 135):
            a(f"v_add_f32 v{r}, 1.0, v{r}")
        for r in (132, 133, 134, 135):
            a(f"v_min_f32 v{r}, s{T3}, v{r}")
        units = []
        for p in range(3):
            for b in range(4):
                units.append(([(16 * (2 * p) + 4 * b, b), (16 * (2 * p + 1) + 4 * b, b)], SSTR5, 1024 * b, p))
        for q in range(2):
            units.append(([(96 + 8 * q, 2 * q), (96 + 8 * q + 4, 2 * q + 1)], SSTR, 2048 * q, None))
        for u, (blks, sreg, off, p) in enumerate(units):
            t = 112 + 8 * (u & 1)
            pr = [(x + 2 * h, t + 4 * i + 2 * h, b) for i, (x, b) in enumerate(blks) for h in range(2)]
            for x, y, b in pr:
                a(f"v_pk_mul_f32 v[{y}:{y+1}], v[{x}:{x+1}], v[{x}:{x+1}]")
            for x, y, b in pr:
                a(f"v_pk_fma_f32 v[{y}:{y+1}], v[{y}:{y+1}], s[{T4}:{T5}], v[138:139]")
            for x, y, b in pr:
                a(f"v_pk_mul_f32 v[{y}:{y+1}], v[{y}:{y+1}], v[{x}:{x+1}]")
            for i in range(8):
                a(f"v_exp_f32 v{t+i}, v{t+i}")
            for x, y, b in pr:
                c = 132 + (b & ~1)
                s = b & 1
                a(f"v_pk_fma_f32 v[{y}:{y+1}], v[{y}:{y+1}], v[{c}:{c+1}], v[{c}:{c+1}] op_sel:[0,{s},{s}] op_sel_hi:[1,{s},{s}]")
            for i in range(8):
                a(f"v_rcp_f32 v{t+i}, v{t+i}")
            for x, y, b in pr:
                a(f"v_pk_mul_f32 v[{y}:{y+1}], v[{y}:{y+1}], v[{x}:{x+1}]")
            d = 140 if (u & 1) else 128
            for i in range(4):
                a(f"v_cvt_pk_bf16_f32 v{d+i}, v{t+2*i}, v{t+2*i+1}")
            if not self.o["abl"] & 256:
                a(f"buffer_store_dwordx4 v[{d}:{d+3}], v145, {R(SWS)}, s{sreg} offen offset:{off} sc1")
            if p is not None and off == 3072 and p < 2:
                a(f"s_add_u32 s{SSTR5}, s{SSTR5}, 4096")
        a("s_branch L_CDONE")

    def att(self):
        a = self.a
        a.label("L_C_ATT")
        a(f"""v_lshrrev_b32 v155, 1, v151
        v_mul_u32_u24 v155, 6144, v155
        v_and_b32 v156, 1, v151
        v_lshl_add_u32 v155, v156, 10, v155
        v_lshl_add_u32 v155, v152, 7, v155
        v_lshl_add_u32 v155, v153, 3, v155
        v_add_u32 v155, {BUF[0] + 18432}, v155
        v_lshrrev_b32 v157, 1, v152
        v_lshl_or_b32 v157, v156, 1, v157
        s_lshl_b32 s{T0}, s{SWC}, 1
        v_xor_b32 v157, s{T0}, v157
        v_lshl_add_u32 v130, v157, 5, v155
        v_xor_b32 v131, 32, v130
        v_add_u32 v155, 128, v150
        v_lshrrev_b32 v156, 3, v150
        v_lshl_add_u32 v156, v156, 3, v150
        v_add_u32 v156, 40, v156
        s_cmp_eq_u32 s{SWR}, 1
        s_cselect_b64 vcc, -1, 0
        v_cndmask_b32 v155, v155, v156, vcc
        v_bfe_u32 v156, v155, 1, 3
        v_bfe_u32 v157, v155, 4, 1
        v_lshlrev_b32 v157, 2, v157
        v_xor_b32 v156, v156, v157
        v_xor_b32 v156, v156, v151
        v_lshlrev_b32 v155, 7, v155
        v_lshl_add_u32 v155, v156, 4, v155
        v_add_u32 v132, {BUF[0]}, v155
        v_xor_b32 v133, 64, v132
        v_mov_b32 v155, {fbits(-1e30)}
        v_lshlrev_b32 v156, 2, v151
        v_sub_u32 v156, v150, v156
        s_or_b32 s{T0}, s{RT}, s{SWR}
        s_cmp_lg_u32 s{T0}, 0
        s_cselect_b64 s[{T2}:{T3}], -1, 0""")
        for r in range(4):
            a(f"""v_subrev_u32 v157, {r}, v156
            v_cmp_gt_u32 vcc, 8, v157
            s_nop 1
            v_cndmask_b32 v{112+r}, v155, 0, vcc
            v_cmp_ge_i32 vcc, -9, v157
            s_nop 1
            v_cndmask_b32 v{116+r}, v155, 0, vcc
            s_and_b64 vcc, vcc, s[{T2}:{T3}]
            v_cndmask_b32 v{120+r}, v155, 0, vcc
            v_cmp_ge_i32 vcc, -1, v157
            s_and_b64 vcc, vcc, s[{T2}:{T3}]
            s_mov_b32 vcc_hi, 0
            v_cndmask_b32 v{124+r}, v155, 0, vcc""")
        for i in range(112):
            a(f"v_mov_b32 v{i}, 0")
        Q = lambda hh, b: 16 * hh + 4 * b
        K = lambda hh, b: 32 + 20 * hh + 4 * b
        vpos = {3: 0, 1: 1, 4: 2, 0: 3, 2: 4}
        V = lambda hh, b: 72 + 20 * hh + 4 * vpos[b]

        def reads(ks, fb):
            out = []
            for b in range(4):
                out.append(f"ds_read_b128 a[{fb+4*b}:{fb+4*b+3}], v{128 + (ks ^ (b & 1))} offset:{2048*b}")
            out.append(f"ds_read_b128 a[{fb+16}:{fb+19}], v{132 + ks}")
            for seg in range(3):
                for hh in range(2):
                    for h in range(2):
                        d = fb + 20 + 8 * seg + 4 * hh + 2 * h
                        out.append(f"ds_read_b64_tr_b16 a[{d}:{d+1}], v{130+hh} offset:{12288*ks + 2048*seg + 512*h}")
            return out

        def mfmas(fb):
            out = []
            for seg, fn, nb in ((0, Q, 4), (1, K, 5), (2, V, 5)):
                for hh in range(2):
                    w = fb + 20 + 8 * seg + 4 * hh
                    for b in range(nb):
                        d, x = fn(hh, b), fb + 4 * b
                        p, q = (w, x) if seg < 2 else (x, w)
                        out.append(f"v_mfma_f32_16x16x32_bf16 v[{d}:{d+3}], a[{p}:{p+3}], a[{q}:{q+3}], v[{d}:{d+3}]")
            return out

        self.main_loop("L_ALOOP", reads, mfmas, [128, 129, 130, 131, 132, 133])
        self.z_reads()
        a(f"""s_lshl_b32 s{T0}, s{CT}, 1
        s_add_u32 s{T0}, s{T0}, s{SWC}
        s_add_u32 s{T0}, s{T0}, 56
        s_lshl_b32 s{T0}, s{T0}, 12
        s_add_u32 s{SSTR}, s{SSTR}, s{T0}
        s_mov_b32 s{T2}, {fbits(-LOG2E)}
        s_mov_b32 s{T4}, {fbits(0.25*LOG2E)}
        s_mov_b32 s{T5}, {fbits(0.25*LOG2E)}""")
        for base, n in ((0, 16), (32, 10), (52, 10), (72, 10), (92, 10)):
            for i in range(n):
                a(f"v_cvt_pk_bf16_f32 v{base+i}, v{base+2*i}, v{base+2*i+1}")
        a("s_waitcnt lgkmcnt(0)")
        for r in range(132, 136):
            a(f"v_mul_f32 v{r}, s{T2}, v{r}")
        for r in range(132, 136):
            a(f"v_exp_f32 v{r}, v{r}")
        for i in range(4):
            a(f"v_mov_b32 v{128+i}, 0x3f803f80")
        for r in range(132, 136):
            a(f"v_add_f32 v{r}, 1.0, v{r}")
        Qp = lambda hh, b: 8 * hh + 2 * b
        Kp = lambda hh, b: 32 + 20 * hh + 2 * b
        Vp = lambda hh, b: 72 + 20 * hh + 2 * vpos[b]
        prev = {0: 4, 1: 4, 2: 0, 3: 1}
        pmask = {0: 124, 1: 120, 2: 116, 3: 116}
        S = [16, 24, 42, 62]
        MX = [50, 70, 82, 102]
        OO = [84, 88, 104, 108]
        SUM = [136, 140, 146, 150]
        for hh in range(2):
            for b in range(4):
                cur, prv = (S[b] + 4, S[b]) if b in (0, 2) else (S[b], S[b] + 4)
                q = Qp(hh, b)
                k = Kp(hh, b)
                a(f"v_mfma_f32_16x16x16_bf16 v[{cur}:{cur+3}], v[{k}:{k+1}], v[{q}:{q+1}], v[112:115]")
                k = Kp(hh, prev[b])
                a(f"v_mfma_f32_16x16x16_bf16 v[{prv}:{prv+3}], v[{k}:{k+1}], v[{q}:{q+1}], v[{pmask[b]}:{pmask[b]+3}]")
            a("s_nop 7")
            for b in range(4):
                s, m = S[b], MX[b]
                a(f"v_max3_f32 v{m}, v{s}, v{s+1}, v{s+2}\nv_max3_f32 v{m+1}, v{s+3}, v{s+4}, v{s+5}")
            for b in range(4):
                s, m = S[b], MX[b]
                a(f"v_max3_f32 v{m}, v{m}, v{s+6}, v{s+7}")
            for b in range(4):
                m = MX[b]
                a(f"v_max_f32 v{m}, v{m}, v{m+1}")
            for sw in ("v_permlane16_swap_b32", "v_permlane32_swap_b32"):
                for b in range(4):
                    a(f"v_mov_b32 v{MX[b]+1}, v{MX[b]}")
                a("s_nop 1")
                for b in range(4):
                    a(f"{sw} v{MX[b]+1}, v{MX[b]}")
                a("s_nop 1")
                for b in range(4):
                    a(f"v_max_f32 v{MX[b]}, v{MX[b]}, v{MX[b]+1}")
            for b in range(4):
                a(f"v_mul_f32 v{MX[b]}, s{T4}, v{MX[b]}")
            for b in range(4):
                s, m = S[b], MX[b]
                for i in range(4):
                    a(f"v_pk_fma_f32 v[{s+2*i}:{s+2*i+1}], v[{s+2*i}:{s+2*i+1}], s[{T4}:{T5}], v[{m}:{m+1}] "
                      f"op_sel_hi:[1,1,0] neg_lo:[0,0,1] neg_hi:[0,0,1]")
            for b in range(4):
                for i in range(8):
                    a(f"v_exp_f32 v{S[b]+i}, v{S[b]+i}")
            a("s_nop 0")
            for b in range(4):
                for i in range(4):
                    a(f"v_cvt_pk_bf16_f32 v{S[b]+i}, v{S[b]+2*i}, v{S[b]+2*i+1}")
            a("s_nop 1")
            for b in range(4):
                s = S[b]
                v = min(Vp(hh, b), Vp(hh, prev[b]))
                a(f"v_mfma_f32_16x16x32_bf16 v[{SUM[b]}:{SUM[b]+3}], v[128:131], v[{s}:{s+3}], 0")
                a(f"v_mfma_f32_16x16x32_bf16 v[{OO[b]}:{OO[b]+3}], v[{v}:{v+3}], v[{s}:{s+3}], 0")
            a("s_nop 7")
            for b in range(4):
                a(f"v_mul_f32 v{SUM[b]}, v{SUM[b]}, v{132+b}")
            for b in range(4):
                a(f"v_rcp_f32 v{SUM[b]}, v{SUM[b]}")
            a("s_nop 0")
            for b in range(4):
                for i in range(2):
                    x = OO[b] + 2 * i
                    a(f"v_pk_mul_f32 v[{x}:{x+1}], v[{x}:{x+1}], v[{SUM[b]}:{SUM[b]+1}] op_sel_hi:[1,0]")
            if hh == 0:
                for b in range(4):
                    for i in range(2):
                        a(f"v_cvt_pk_bf16_f32 v{2*b+i}, v{OO[b]+2*i}, v{OO[b]+2*i+1}")
            else:
                for b in range(4):
                    s = S[b]
                    a(f"v_mov_b32 v{s}, v{2*b}\nv_mov_b32 v{s+1}, v{2*b+1}")
                    for i in range(2):
                        a(f"v_cvt_pk_bf16_f32 v{s+2+i}, v{OO[b]+2*i}, v{OO[b]+2*i+1}")
                    a(f"buffer_store_dwordx4 v[{s}:{s+3}], v145, {R(SWS)}, s{SSTR} offen offset:{1024*b} sc1")

    def lds_wait(self, off, ar=None, dr=151):
        a = self.a
        l1, l2 = self.lab("L_LW"), self.lab("L_LWX")
        if ar is None:
            ar = 150
            a(f"s_lshl_b32 s{T0}, s{LW}, 2\nv_mov_b32 v150, s{T0}")
        a(f"s_mov_b32 s{T1}, {POLL_MAX}")
        a.label(l1)
        a(f"""ds_read_b32 v{dr}, v{ar} offset:{off}
        s_sub_u32 s{T1}, s{T1}, 1
        s_cbranch_scc1 {l2}
        s_waitcnt lgkmcnt(0)
        v_cmp_ne_u32 vcc, 1, v{dr}
        s_cbranch_vccnz {l1}""")
        a.label(l2)

    def compute_tail(self):
        a = self.a
        a.label("L_CDONE")
        self.stamp(3)
        a(f"s_lshl_b32 s{T0}, s{LW}, 2\nv_mov_b32 v156, s{T0}\nds_read_b32 v155, v156 offset:{LANDED_OFF}")
        self.p2_setup()
        self.publish()
        self.tr_addr_setup()
        a(f"s_mov_b32 s{SD5}, 0\ns_waitcnt lgkmcnt(0)\nv_cmp_ne_u32 vcc, 1, v155\ns_cbranch_vccz L_CDRAIN")
        a(self.publish_store(0))
        a(f"s_mov_b32 s{SD5}, 1")
        self.lds_wait(LANDED_OFF, 156, 155)
        a.label("L_CDRAIN")
        a(self.flag_load())
        for j in range(9):
            self.drain(j)
        a(f"s_cmp_eq_u32 s{SD5}, 1\ns_cbranch_scc1 L_CPUB0")
        a(self.publish_store(1))
        a.label("L_CPUBX")
        self.late.append("L_CPUB0:\ns_waitcnt vmcnt(0)\ns_branch L_CPUBX")
        a(f"v_mov_b32 v151, 1\ns_waitcnt vmcnt(1) lgkmcnt(0)\nds_write_b32 v156, v151 offset:{DRAINED_OFF}")

    def flag_load(self):
        return f"buffer_load_dword v157, v159, {R(SWS)}, s{SK0} offen sc1"

    def poll(self, mask):
        a = self.a
        l1, l2, l3 = self.lab("L_PL"), self.lab("L_PLX"), self.lab("L_PLC")
        a(f"s_mov_b32 s{T1}, {POLL_MAX}")
        a.label(l3)
        a(f"v_cmp_ne_u32 vcc, s{SE}, v157\ns_and_b32 s{T0}, vcc_lo, {mask}\ns_cbranch_scc1 {l1}")
        a.label(l2)
        self.late.append(f"""{l1}:
        {self.flag_load()}
        s_sub_u32 s{T1}, s{T1}, 1
        s_cbranch_scc1 {l2}
        s_waitcnt vmcnt(0)
        s_branch {l3}""")

    def p2_setup(self):
        a = self.a
        a(f"""s_lshr_b32 s{T0}, s{M}, 1
        s_lshl_b32 s{T0}, s{T0}, 4
        s_add_u32 s{T0}, s{T0}, s{PW}
        s_lshl_b32 s{T0}, s{T0}, 8
        s_and_b32 s{T2}, s{M}, 1
        s_lshl_b32 s{T2}, s{T2}, 7
        s_add_u32 s{T0}, s{T0}, s{T2}
        s_add_u32 s{SK0}, s{T0}, {FLAG_OFF}
        v_and_b32 v159, 1, v{LANE}
        v_and_b32 v149, 2, v{LANE}
        v_lshlrev_b32 v159, 2, v159
        v_lshl_add_u32 v159, v149, 10, v159
        v_lshlrev_b32 v149, 4, v{LANE}
        s_mul_i32 s{SSTR}, s{M}, {72*4096}
        s_lshl_b32 s{T2}, s{PW}, 13
        s_add_u32 s{SSTR5}, s{SSTR}, s{T2}
        s_add_u32 s{SSTR5}, s{SSTR5}, {56*4096}
        s_mul_i32 s{T2}, s{PW}, {7*4096}
        s_add_u32 s{SSTR}, s{SSTR}, s{T2}""")
        srd(a, SM, 18, 1024)

    A2DEST = {0: ("v", 64), 1: ("v", 80), 2: ("v", 64), 3: ("v", 96), 4: ("v", 80), 5: ("v", 112),
              6: ("v", 64), 7: ("v", 128), 8: ("v", 96)}

    def a2_loads(self, k):
        a = self.a
        t, b = self.A2DEST[k]
        s = SSTR5 if k < 2 else SSTR
        self.kstep(k, T3)
        a(f"s_lshl_b32 s{T3}, s{T3}, 12\ns_add_u32 s{T3}, s{T3}, s{s}")
        if self.o["abl"] & 1024:
            a(f"s_lshl_b32 s{T3}, s{WAVE}, 12")
        for rb in range(4):
            a(f"buffer_load_dwordx4 {vr(b+4*rb, 4, t)}, v149, {R(SWS)}, s{T3} offen offset:{1024*rb} sc1")

    def phase2(self):
        a = self.a
        a.label("L_P2")
        a(f"s_setprio {self.o['cp2']}")
        self.stamp(4)
        self.poll(12)
        dest, loads = self.A2DEST, self.a2_loads

        def mm(k):
            t, b = dest[k]
            wt, wb = self.wreg(k)
            if k >= 2:
                a(f"s_cmp_eq_u32 s{SROT}, {(5 - k) % 7}\ns_cbranch_scc1 L_SWP{k}")
                a.label(f"L_SWPX{k}")
                sw = "".join(f"v_swap_b32 v{b+8*q+2+e}, v{b+8*q+4+e}\n" for q in range(2) for e in range(2))
                self.late.append(f"L_SWP{k}:\n{sw}s_nop 1\ns_branch L_SWPX{k}")
            for rb in range(1 if self.o["abl"] & 2048 else 4):
                for f in range(4):
                    d = 16 * rb + 4 * f
                    c = "0" if k == 0 else f"v[{d}:{d+3}]"
                    a(f"v_mfma_f32_16x16x32_bf16 v[{d}:{d+3}], {vr(wb+4*f, 4, wt)}, {vr(b+4*rb, 4, t)}, {c}")

        a(f"s_and_b32 s{SD5}, vcc_lo, 3")
        loads(0); loads(1)
        a.label("L_P2B")
        self.stamp(5)
        a(f"s_cmp_eq_u32 s{SD5}, 0\ns_cbranch_scc1 L_FAST")
        a(self.flag_load())
        a("s_waitcnt vmcnt(5) lgkmcnt(0)")
        mm(0)
        a("s_waitcnt vmcnt(1)")
        mm(1)
        a("s_waitcnt vmcnt(0)")
        self.poll(3)
        loads(2); loads(3); loads(4); loads(5)
        a("s_branch L_MERGE")
        a.label("L_FAST")
        a("s_waitcnt vmcnt(4) lgkmcnt(0)")
        mm(0)
        loads(2); loads(3)
        a("s_waitcnt vmcnt(8)")
        mm(1)
        loads(4); loads(5)
        a.label("L_MERGE")
        self.stamp(6)
        a(f"""s_lshl_b32 s{T0}, s{M}, 10
        s_lshl_b32 s{T2}, s{WAVE}, 7
        s_add_u32 s{T0}, s{T0}, s{T2}
        s_add_u32 s{T0}, s{T0}, {AUX_OFF}
        v_and_b32 v156, 0x38, v{LANE}
        buffer_load_dword v156, v156, {R(SWS)}, s{T0} offen sc1
        v_and_b32 v150, 7, v{LANE}
        v_lshlrev_b32 v150, 4, v150
        s_lshl_b32 s{T2}, s{N}, 7
        buffer_load_dwordx4 v[152:155], v150, {R(SM)}, s{T2} offen
        s_waitcnt vmcnt(14)""")
        mm(2)
        loads(6); loads(7)
        a("s_waitcnt vmcnt(18)")
        mm(3)
        loads(8)
        a(f"""v_and_b32 v150, 15, v{LANE}
        v_lshrrev_b32 v151, 4, v{LANE}
        v_and_b32 v157, 2, v151
        v_xor_b32 v150, v150, v157
        v_lshlrev_b32 v150, 4, v150
        v_lshl_add_u32 v150, v151, 8, v150
        s_lshl_b32 s{T0}, s{LW}, 12
        s_add_u32 s{T0}, s{T0}, 4096
        s_cmp_lt_u32 s{WAVE}, 4
        s_cselect_b32 s{T2}, 0x10000, 0
        s_add_u32 s{T0}, s{T0}, s{T2}
        v_add_u32 v145, s{T0}, v150""")
        for f in range(1, 4):
            a(f"v_xor_b32 v{145+f}, {64*f}, v145\nv_add_u32 v{145+f}, {1024*f}, v{145+f}")
        a("s_waitcnt vmcnt(18)")
        mm(4)
        a("s_waitcnt vmcnt(14)")
        mm(5)
        self.lds_wait(DRAINED_OFF)
        a("s_waitcnt vmcnt(8)")
        mm(6)
        a("s_waitcnt vmcnt(4)")
        mm(7)
        a("s_waitcnt vmcnt(0)")
        mm(8)
        self.stamp(7)
        a(f"""v_lshrrev_b32 v150, 3, v{LANE}
        s_and_b32 s{T0}, s{WAVE}, 1
        s_lshl_b32 s{T0}, s{T0}, 3
        v_add_u32 v150, s{T0}, v150
        v_and_b32 v151, 7, v{LANE}
        v_lshlrev_b32 v157, 1, v151
        v_xor_b32 v157, v157, v150
        v_lshlrev_b32 v157, 4, v157
        v_lshl_add_u32 v157, v151, 9, v157
        s_lshr_b32 s{T1}, s{WAVE}, 1
        s_lshl_b32 s{T2}, s{T1}, 14
        s_add_u32 s{T2}, s{T2}, 4096
        v_add_u32 v157, s{T2}, v157
        v_add_u32 v158, 0x10000, v157""")
        for rb in range(4):
            for f in range(4):
                d = 16 * rb + 4 * f
                a(f"ds_write_b128 v{145+f}, v[{d}:{d+3}] offset:{16384*rb}")
        a(f"""s_lshr_b32 s{T2}, s{T1}, 1
        s_lshl_b32 s{T2}, s{T2}, 5
        s_and_b32 s{T1}, s{T1}, 1
        s_add_u32 s{T2}, s{T2}, s{T1}
        s_lshl_b32 s{T1}, s{M}, 6
        s_add_u32 s{T2}, s{T2}, s{T1}
        v_lshl_add_u32 v150, v150, 1, s{T2}
        v_lshlrev_b32 v150, 10, v150
        v_lshl_add_u32 v150, v151, 4, v150
        s_lshl_b32 s{T2}, s{N}, 7""")
        a(f"v_mul_f32 v156, {fbits(LOG2E)}, v156\nv_exp_f32 v156, v156\ns_nop 0\nv_add_f32 v156, 1.0, v156\nv_rcp_f32 v156, v156")
        for i in range(4):
            a(f"v_lshlrev_b32 v{64+2*i}, 16, v{152+i}\nv_and_b32 v{65+2*i}, 0xffff0000, v{152+i}")
        for i in range(8):
            a(f"v_mul_f32 v{64+i}, v156, v{64+i}")
        a("s_waitcnt lgkmcnt(0)\ns_barrier")
        for pw in range(8):
            for gg in range(2):
                d = 8 * pw + 4 * gg
                a(f"ds_read_b128 v[{d}:{d+3}], v{157 + (pw >> 2)} offset:{4096*(pw & 3) + 256*gg}")
        for pw in range(8):
            a(f"s_waitcnt lgkmcnt({14 - 2*pw})")
            for i in range(4):
                a(f"v_pk_add_f32 v[{64+2*i}:{65+2*i}], v[{64+2*i}:{65+2*i}], v[{8*pw+2*i}:{8*pw+2*i+1}]")
        for i in range(4):
            a(f"v_cvt_pk_bf16_f32 v{72+i}, v{64+2*i}, v{65+2*i}")
        a(f"buffer_store_dwordx4 v[72:75], v150, {R(SOUT)}, s{T2} offen")
        if self.o["prof"]:
            a(f"s_waitcnt vmcnt(0)\ns_memtime s[4:5]\ns_getreg_b32 s6, hwreg(HW_REG_HW_ID)\ns_waitcnt lgkmcnt(0)")
            a(f"s_lshl_b32 s{T0}, s2, 3\ns_add_u32 s{T0}, s{T0}, s{WAVE}\ns_lshl_b32 s{T0}, s{T0}, 6\ns_add_u32 s{T0}, s{T0}, {STAMP_OFF}")
            a("s_mov_b64 exec, 1\nv_mov_b32 v1, 0")
            for i in range(10):
                src = f"s{STAMP0+2*i}" if i < 8 else ("s4" if i == 8 else "s6")
                a(f"v_mov_b32 v2, {src}\nbuffer_store_dword v2, v1, {R(SWS)}, s{T0} offen offset:{4*i}")
        if self.o["spin"] >= 0:
            a(f"s_lshr_b32 s{T0}, s{WAVE}, 2\ns_cmp_lg_u32 s{T0}, {self.o['spinw']}\ns_cbranch_scc1 L_END")
            a.label("L_SPIN")
            a("s_sleep 2\ns_memrealtime s[96:97]\ns_waitcnt lgkmcnt(0)\ns_sub_u32 s96, s96, s98\ns_cmp_lt_u32 s96, 4000\ns_cbranch_scc1 L_SPIN")
        a.label("L_END")
        a("s_endpgm")
        for t in self.late:
            a(t)

    def build(self):
        self.prologue()
        self.loader()
        self.compute_common_setup()
        self.ffn()
        self.att()
        self.compute_tail()
        self.phase2()
        ref = open(f"cdna_kernels/{KNAME}.s.ref").read().split("\n")
        head = [l for l in ref if l.startswith(";") and "@launch" not in l]
        name = KNAME + "_kernel"
        return ("\n".join(head) + "\n; @launch grid=(256,1,1) block=(512,1,1) lds=163840\n" + HEAD + kernel_open(name)
                + self.a.text() + '.section .rodata,"a"\n.p2align 6\n' + kernel_desc(name, 256, 160))

if __name__ == "__main__":
    out = sys.argv[1]
    kw = {}
    for s in sys.argv[2:]:
        k, v = s.split("=")
        kw[k] = int(v)
    open(out, "w").write(Gen(**kw).build())
```
